```python
import torch

def _softmax(x, axis=-1):
    return torch.softmax(x, dim=axis)
def _gelu(x):
    return torch.nn.functional.gelu(x, approximate="tanh")
def _silu(x):
    return torch.nn.functional.silu(x)
def _sigmoid(x):
    return torch.sigmoid(x)
def _layernorm(x, axis=-1, eps=1e-5):
    m = x.mean(dim=axis, keepdim=True)
    v = x.var(dim=axis, keepdim=True, unbiased=False)
    return (x - m) / torch.sqrt(v + eps)
def _scatter_add(tgt, idx, src, axis=0):
    return tgt.clone().index_add_(axis, idx, src)
def _segment_sum(src, seg, n):
    out = torch.zeros((n,) + src.shape[1:], dtype=src.dtype)
    return out.index_add_(0, seg, src)
def _pad(x, pw):
    flat = tuple(v for pair in reversed(pw) for v in pair)
    return torch.nn.functional.pad(x, flat)

kernel_name = 'standalone__edge_featured_mpnn_gatedgcn__graph'

def setup_inputs():

    _w = (lambda a: (lambda t: t.to(torch.bfloat16) if t.is_floating_point() else t)(torch.as_tensor(a)))
    N, deg, D, De = 12500, 32, 128, max(16, 1)
    E = N * deg
    return {
        "x": _w((lambda *s: torch.randn(*s, dtype=torch.bfloat16) * 0.4)(N, D)),
        "e_attr": _w((lambda *s: torch.randn(*s, dtype=torch.bfloat16) * 0.8)(E, De)),
        "src": _w((lambda lo, hi, *s: torch.randint(lo, hi, s))(0, N, E).to(torch.int64)),
        "dst": _w((lambda lo, hi, *s: torch.randint(lo, hi, s))(0, N, E).to(torch.int64)),
        "w_a": _w((lambda *s: torch.randn(*s, dtype=torch.bfloat16) * 0.4)(D, D)),
        "w_b": _w((lambda *s: torch.randn(*s, dtype=torch.bfloat16) * 0.4)(D, D)),
        "w_c": _w((lambda *s: torch.randn(*s, dtype=torch.bfloat16) * 0.8)(De, D)),
        "w_u": _w((lambda *s: torch.randn(*s, dtype=torch.bfloat16) * 0.05)(D, D)),
        "w_v": _w((lambda *s: torch.randn(*s, dtype=torch.bfloat16) * 0.05)(D, D)),
    }

def reference(x, e_attr, src, dst, w_a, w_b, w_c, w_u, w_v):
    N, D = x.shape
    hv = x @ w_v
    g = x[dst] @ w_a + x[src] @ w_b + e_attr @ w_c
    eta = _sigmoid(g)
    denom = _segment_sum(eta, dst, N) + 1e-6
    eta_n = eta / denom[dst]
    agg = _segment_sum(eta_n * hv[src], dst, N)
    z = x @ w_u + agg
    relu_z = torch.where(z > 0, z, 0 * z)
    return x + relu_z
```

```python
import sys, struct

NAME = "standalone__edge_featured_mpnn_gatedgcn__graph"
N, E = 12500, 400000
NCHUNK, CH = 125, 3200
NRANGE, RN = 256, 49
SPLIT = 6272
NGEMM = 196
WS_BV    = 0x1000
WS_MISC  = 0x2000000
WS_CELLS = WS_MISC
WS_OVFC  = WS_CELLS + 0x400000
WS_OVFR  = WS_OVFC + 0x1000
WS_OVFG  = WS_OVFR + 0x200000
WS_WF    = WS_OVFG + 0x200000
WS_WC    = WS_WF + 0x10000
WS_PEND  = WS_WC + 0x1000
WS_END   = WS_PEND + 0x400000
NEG_LOG2E = struct.unpack('<I', struct.pack('<f', -1.4426950408889634))[0]
EPS = struct.unpack('<I', struct.pack('<f', 1e-6))[0]

class Asm:
    def __init__(self): self.l = []
    def __call__(self, s):
        for x in s.strip('\n').split('\n'):
            self.l.append(x if x.rstrip().endswith(':') and not x.startswith(' ') else '    ' + x.strip())
    def label(self, s): self.l.append(s + ':')
    def raw(self, s): self.l.append(s)
    def text(self): return '\n'.join(self.l) + '\n'

def vr(a, n): return f"v[{a}:{a+n-1}]"
def sr(a, n): return f"s[{a}:{a+n-1}]"

def srd(a, d, lo, hi, nbytes, w3=0x00020000, add=0, w1or=0):
    if add:
        a(f"s_add_u32 s{d}, s{lo}, {add:#x}")
        a(f"s_addc_u32 s{d+1}, s{hi}, 0")
    else:
        a(f"s_mov_b32 s{d}, s{lo}")
        a(f"s_mov_b32 s{d+1}, s{hi}")
    if w1or: a(f"s_or_b32 s{d+1}, s{d+1}, {w1or:#x}")
    a(f"s_mov_b32 s{d+2}, {nbytes:#x}")
    a(f"s_mov_b32 s{d+3}, {w3:#x}")

def load_kernargs(a):
    a("s_load_dwordx16 s[8:23], s[0:1], 0")
    a("s_load_dwordx8 s[24:31], s[0:1], 64")

def prep_kernel(a):
    K = "prep_kernel"
    a.raw(f".globl {K}\n.p2align 8\n.type {K},@function")
    a.label(K)
    a(f"s_cmp_ge_u32 s2, {NCHUNK+NGEMM+1}")
    a("s_cbranch_scc1 P_end")
    load_kernargs(a)
    a("v_lshrrev_b32 v1, 6, v0")
    a("v_and_b32 v2, 63, v0          ; lane")
    a("v_readfirstlane_b32 s3, v1")
    a(f"s_cmp_lt_u32 s2, {NCHUNK}")
    a("s_cbranch_scc1 P_bin")
    a(f"s_sub_u32 s4, s2, {NCHUNK}     ; b")
    a("""
    v_lshrrev_b32 v3, 4, v2       ; row_in
    v_and_b32 v4, 15, v2          ; c
    v_lshlrev_b32 v5, 2, v3
    v_xor_b32 v5, v4, v5
    v_lshlrev_b32 v5, 4, v5
    v_lshl_or_b32 v5, v3, 8, v5
    """)
    a("""
    s_lshl_b32 s5, s3, 3          ; 8w
    v_add_u32 v6, s5, v3          ; row (j=0)
    v_and_b32 v7, 15, v6
    v_xor_b32 v7, v4, v7          ; chunk j=0
    v_xor_b32 v8, 4, v7
    s_lshl_b32 s6, s4, 6          ; b*64
    v_add_u32 v6, s6, v6
    v_lshlrev_b32 v6, 8, v6
    v_lshl_add_u32 v7, v7, 4, v6  ; voffset j=0
    v_lshl_add_u32 v8, v8, 4, v6
    s_waitcnt lgkmcnt(0)
    """)
    a(f"s_cmp_eq_u32 s4, {NGEMM}")
    a("s_cselect_b32 s32, s16, s18   ; w_a : w_b")
    a("s_cselect_b32 s33, s17, s19")
    a("s_cselect_b32 s36, s22, s24   ; w_u : w_v")
    a("s_cselect_b32 s37, s23, s25")
    a("s_mov_b32 s34, 0x8000\ns_mov_b32 s35, 0x00020000\ns_mov_b32 s38, 0x8000\ns_mov_b32 s39, 0x00020000")
    srd(a, 40, 8, 9, N*256)
    a("s_lshl_b32 s7, s3, 12         ; w*4096")
    a("s_lshl_b32 s44, s3, 11        ; w*2048")
    a("s_add_u32 s44, s44, 0x10000")
    a("s_mov_b32 m0, s44")
    a("s_nop 0")
    a("buffer_load_dwordx4 v7, s[40:43], 0 offen lds")
    a("buffer_load_dwordx4 v8, s[40:43], 0 offen offset:1024 lds")
    a("s_mov_b32 m0, s7")
    a("s_add_u32 s44, s7, 0x8000")
    for j in range(4):
        a(f"buffer_load_dwordx4 v5, s[32:35], s7 offen offset:{j*1024} lds")
    a("s_mov_b32 m0, s44")
    a("s_nop 0")
    for j in range(4):
        a(f"buffer_load_dwordx4 v5, s[36:39], s7 offen offset:{j*1024} lds")
    a("""
    s_and_b32 s45, s3, 3          ; ft
    s_lshr_b32 s46, s3, 2         ; mt
    v_lshrrev_b32 v9, 1, v3       ; h
    v_lshrrev_b32 v10, 2, v4      ; r
    v_and_b32 v11, 3, v4          ; c
    v_and_b32 v12, 1, v3          ; G&1
    v_lshlrev_b32 v12, 1, v12
    v_lshrrev_b32 v13, 1, v11
    v_add_u32 v12, v12, v13       ; 2(G&1)+(c>>1)
    s_lshl_b32 s47, s45, 2
    v_add_u32 v12, s47, v12       ; chunk16
    v_lshlrev_b32 v13, 2, v10
    v_xor_b32 v12, v12, v13       ; swizzled
    v_lshlrev_b32 v12, 4, v12
    v_and_b32 v13, 1, v11
    v_lshl_add_u32 v12, v13, 3, v12
    v_lshl_add_u32 v13, v9, 3, v10 ; 8h+r
    v_lshl_add_u32 v12, v13, 8, v12
    v_and_b32 v13, 31, v2         ; m / n
    s_lshl_b32 s47, s46, 5
    v_add_u32 v14, s47, v13       ; 32mt+m
    v_lshlrev_b32 v14, 8, v14
    v_xor_b32 v15, v9, v4         ; h ^ (m&15)
    v_lshl_or_b32 v14, v15, 4, v14
    v_add_u32 v14, 0x10000, v14   ; v14 = x base
    """)
    a(f"""
    s_cmp_ge_u32 s4, {SPLIT//64}
    s_cselect_b32 s48, {0x1000000 - SPLIT*512:#x}, 0
    s_lshl_b32 s49, s4, 15        ; b*64*512
    s_add_u32 s48, s48, s49
    s_lshl_b32 s49, s46, 14       ; mt*32*512
    s_add_u32 s48, s48, s49
    s_lshl_b32 s49, s45, 7
    s_add_u32 s48, s48, s49
    v_lshlrev_b32 v15, 11, v9     ; 4h*512
    v_lshl_add_u32 v15, v13, 2, v15
    v_add_u32 v15, s48, v15
    """)
    srd(a, 52, 30, 31, 0x1800000, add=WS_BV)
    a("s_mov_b32 s56, 4096\ns_mov_b32 s57, 8192\ns_mov_b32 s58, 12288")
    a(f"s_mov_b32 s59, {NEG_LOG2E:#x}")
    a("s_mov_b32 s60, 0x07060100\ns_mov_b32 s61, 0x07060302")
    a("s_waitcnt vmcnt(0)")
    a("s_barrier")
    WB, WV, AB, AV, XA = 16, 48, 80, 96, 112
    def xread(ks):
        a(f"v_xor_b32 v11, {ks<<5}, v14")
        a(f"ds_read_b128 {vr(XA+4*(ks%4),4)}, v11")
    for ks in range(8):
        if ks < 4: xread(ks)
        for mat, base in ((0, WB), (1, WV)):
            for p in range(2):
                a(f"ds_read_b64_tr_b16 {vr(base+4*ks+2*p,2)}, v12 offset:{mat*32768+ks*4096+p*1024}")
    a(f"s_cmp_eq_u32 s4, {NGEMM}")
    a("s_cbranch_scc1 P_wfrag")
    a("s_waitcnt lgkmcnt(0)")
    for ks in range(8):
        cB = "0" if ks == 0 else vr(AB,16)
        cV = "0" if ks == 0 else vr(AV,16)
        if ks >= 4: a(f"s_waitcnt lgkmcnt({7-ks})")
        a(f"v_mfma_f32_32x32x16_bf16 {vr(AB,16)}, {vr(XA+4*(ks%4),4)}, {vr(WB+4*ks,4)}, {cB}")
        a(f"v_mfma_f32_32x32x16_bf16 {vr(AV,16)}, {vr(XA+4*(ks%4),4)}, {vr(WV+4*ks,4)}, {cV}")
        if ks < 4: xread(ks+4)
    a("s_nop 10")
    for r in range(16):
        a(f"v_mul_f32 v{AB+r}, s59, v{AB+r}")
    for r in range(16):
        a(f"v_add_f32 v{AV+r}, 0, v{AV+r}")
    for r in range(0, 16, 2):
        a(f"v_cvt_pk_bf16_f32 v{AB+r}, v{AB+r}, v{AB+r+1}")
    for r in range(16):
        a(f"v_add_u32 v{AV+r}, 0x8000, v{AV+r}")
    for r in range(16):
        w = "WORD_0" if r % 2 == 0 else "WORD_1"
        a(f"v_sub_u32_sdwa v{AV+r}, v{AV+r}, v{AB+(r&~1)} clamp dst_sel:DWORD dst_unused:UNUSED_PAD src0_sel:DWORD src1_sel:{w}")
    for r in range(16):
        a(f"v_perm_b32 v{AV+r}, v{AV+r}, v{AB+(r&~1)}, s{60 + (r&1)}")
    for r in range(16):
        so = "0" if r//4 == 0 else f"s{55 + r//4}"
        a(f"buffer_store_dword v{AV+r}, v15, s[52:55], {so} offen offset:{(r%4)*512}")
    a("s_endpgm")
    a.label("P_wfrag")
    srd(a, 52, 30, 31, 0x11000, add=WS_WF)
    srd(a, 40, 20, 21, 4096)
    a("""
    s_lshl_b32 s47, s3, 13        ; (mat*4+ft)*8192
    v_lshlrev_b32 v80, 4, v2
    v_add_u32 v81, s47, v80
    v_add_u32 v82, 4096, v81
    v_lshlrev_b32 v83, 11, v9     ; 8h*256
    v_lshl_add_u32 v83, v13, 1, v83
    s_lshl_b32 s47, s45, 6
    v_add_u32 v83, s47, v83
    """)
    for j in range(8):
        a(f"buffer_load_ushort v{84+j}, v83, s[40:43], 0 offen offset:{j*256}")
    a("s_waitcnt lgkmcnt(0)")
    a("s_cmp_eq_u32 s46, 0")
    a("s_cbranch_scc0 P_wf1")
    for ks in range(8):
        a(f"buffer_store_dwordx4 {vr(WB+4*ks,4)}, v{81 + ks//4}, s[52:55], 0 offen offset:{(ks%4)*1024}")
    a("s_waitcnt vmcnt(8)")
    for j in range(8):
        a(f"v_lshlrev_b32 v{84+j}, 16, v{84+j}")
    for j in range(8):
        a(f"v_mul_f32 v{84+j}, s59, v{84+j}")
    for j in range(4):
        a(f"v_cvt_pk_bf16_f32 v{92+j}, v{84+2*j}, v{85+2*j}")
    a("s_lshl_b32 s47, s45, 10")
    a("s_add_u32 s47, s47, 0x10000")
    a("buffer_store_dwordx4 v[92:95], v80, s[52:55], s47 offen")
    a("s_endpgm")
    a.label("P_wf1")
    for ks in range(8):
        a(f"buffer_store_dwordx4 {vr(WV+4*ks,4)}, v{81 + ks//4}, s[52:55], 0 offen offset:{(ks%4)*1024}")
    a("s_endpgm")
    a.label("P_bin")
    a("""
    v_lshlrev_b32 v3, 4, v0       ; t*16
    v_mov_b32 v4, 0
    v_mov_b32 v5, 0
    v_mov_b32 v6, 0
    v_mov_b32 v7, 0
    """)
    for j in range(4):
        a(f"ds_write_b128 v3, v[4:7] offset:{j*8192}")
    a("v_lshlrev_b32 v8, 2, v0")
    a("ds_write_b32 v8, v4 offset:32768")
    a(f"s_mul_i32 s4, s2, {CH*4}")
    a("s_waitcnt lgkmcnt(0)")
    a("s_add_u32 s32, s12, s4\ns_addc_u32 s33, s13, 0")
    a(f"s_mov_b32 s34, {CH*4}\ns_mov_b32 s35, 0x00020000")
    a("s_add_u32 s36, s14, s4\ns_addc_u32 s37, s15, 0")
    a(f"s_mov_b32 s38, {CH*4}\ns_mov_b32 s39, 0x00020000")
    a("s_mov_b32 s5, 8192")
    D, S, RK, CA = 12, 20, 28, 36
    a(f"buffer_load_dwordx4 {vr(D,4)}, v3, s[36:39], 0 offen")
    a(f"buffer_load_dwordx4 {vr(D+4,4)}, v3, s[36:39], s5 offen")
    a(f"buffer_load_dwordx4 {vr(S,4)}, v3, s[32:35], 0 offen")
    a(f"buffer_load_dwordx4 {vr(S+4,4)}, v3, s[32:35], s5 offen")
    srd(a, 40, 30, 31, NRANGE*NCHUNK*128, add=WS_CELLS)
    srd(a, 44, 30, 31, WS_WF - WS_OVFC, add=WS_OVFC)
    a(f"""
    v_cmp_gt_u32 vcc, {CH//4 - 512}, v0
    s_mov_b64 s[48:49], vcc
    v_mov_b32 v9, 1
    v_mov_b32 v10, 21400
    v_mov_b32 v11, {32768-SPLIT}
    v_add_u32 v8, 1, v8           ; 4t+1
    s_mov_b32 s50, -49
    s_barrier
    s_waitcnt vmcnt(2)
    """)
    for j in range(8):
        if j == 4: a("s_mov_b64 exec, s[48:49]")
        a(f"v_mul_u32_u24 v{CA+j}, v{D+j}, v10")
        a(f"v_lshrrev_b32 v{CA+j}, 20, v{CA+j}      ; range")
        a(f"v_lshlrev_b32 v44, 2, v{CA+j}")
        a(f"ds_add_rtn_u32 v{RK+j}, v44, v9 offset:32768")
    a("s_mov_b64 exec, -1")
    a("s_waitcnt vmcnt(0)")
    for j in range(8):
        a(f"v_mad_i32_i24 v{D+j}, v{CA+j}, s50, v{D+j}   ; loc")
        a(f"v_and_b32 v44, -4, v{D+j}")
        a(f"v_add_u32 v{D+j}, v{D+j}, v44          ; slot<<3 | g")
        a(f"v_add_u32 v44, v{S+j}, v11")
        a(f"v_lshrrev_b32 v44, 15, v44")
        a(f"v_mad_u32_u24 v{S+j}, v44, v11, v{S+j}")
        a(f"v_add_u32 v44, {(j%4) + (j//4)*2048}, v8")
        a(f"v_lshl_or_b32 v{S+j}, v{S+j}, 12, v44")
        a(f"v_lshl_or_b32 v{S+j}, v{D+j}, 25, v{S+j}   ; rec")
    a("s_waitcnt lgkmcnt(0)")
    a("s_mov_b64 s[52:53], 0")
    for j in range(8):
        if j < 4: a("s_mov_b64 exec, -1")
        else: a("s_mov_b64 exec, s[48:49]")
        a(f"v_add_u32 v44, v{RK+j}, v{CA+j}")
        a(f"v_and_b32 v44, 31, v44")
        a(f"v_lshl_or_b32 v44, v{CA+j}, 5, v44")
        a(f"v_lshlrev_b32 v44, 2, v44")
        a(f"v_cmp_lt_u32 vcc, 31, v{RK+j}")
        a(f"s_or_b64 s[52:53], s[52:53], vcc")
        a(f"s_andn2_b64 exec, exec, vcc")
        a(f"ds_write_b32 v44, v{S+j}")
    a("s_mov_b64 exec, -1")
    a("s_cmp_eq_u64 s[52:53], 0")
    a("s_cbranch_scc1 P_noovf")
    a(f"s_mul_i32 s54, s2, {CH*4}")
    a(f"s_add_u32 s54, s54, {WS_OVFR - WS_OVFC:#x}")
    a(f"s_add_u32 s55, s54, {WS_OVFG - WS_OVFR:#x}")
    a("v_mov_b32 v45, 1024")
    a("v_mov_b32 v46, 0")
    for j in range(8):
        if j < 4: a("s_mov_b64 exec, -1")
        else: a("s_mov_b64 exec, s[48:49]")
        a(f"v_cmp_lt_u32 vcc, 31, v{RK+j}")
        a("s_and_b64 exec, exec, vcc")
        a(f"s_cbranch_execz P_ov{j}")
        a("ds_add_rtn_u32 v46, v45, v9 offset:32768")
        a("s_waitcnt lgkmcnt(0)")
        a("v_lshlrev_b32 v46, 2, v46")
        a(f"buffer_store_dword v{S+j}, v46, s[44:47], s54 offen")
        a(f"buffer_store_dword v{CA+j}, v46, s[44:47], s55 offen")
        a.label(f"P_ov{j}")
    a("s_mov_b64 exec, -1")
    a.label("P_noovf")
    a(f"""
    v_lshrrev_b32 v44, 3, v0
    v_mul_u32_u24 v44, {NCHUNK*128}, v44
    v_and_b32 v45, 7, v0
    v_lshl_add_u32 v44, v45, 4, v44
    s_lshl_b32 s54, s2, 7
    s_add_u32 s55, s54, {64*NCHUNK*128}
    s_add_u32 s56, s55, {64*NCHUNK*128}
    s_add_u32 s57, s56, {64*NCHUNK*128}
    v_mov_b32 v45, 1024
    s_waitcnt lgkmcnt(0)
    s_barrier
    """)
    for j in range(4):
        a(f"ds_read_b128 {vr(12+4*j,4)}, v3 offset:{j*8192}")
    a("ds_read_b32 v46, v45 offset:32768")
    for j in range(4):
        a(f"s_waitcnt lgkmcnt({4-j})")
        a(f"buffer_store_dwordx4 {vr(12+4*j,4)}, v44, s[40:43], s{54+j} offen")
    a("""
    s_lshl_b32 s54, s2, 2
    v_mov_b32 v45, 0
    v_cmp_eq_u32 vcc, 0, v0
    s_and_b64 exec, exec, vcc
    s_cbranch_execz P_end
    s_waitcnt lgkmcnt(0)
    buffer_store_dword v46, v45, s[44:47], s54 offen
    """)
    a.label("P_end")
    a("s_endpgm")

L_RL, L_EO, L_M = 0, 8192, 16384
L_E   = 81920
L_X   = 114688
L_U   = 131072
L_Z   = 147456
L_CNT = L_Z + 4608
L_TOT = L_CNT + 64
PADROW = 0x1000000 + (N - SPLIT)*512 + 128
PADE = 0x3FF000

ACC, G, BV0, BV1, SEL, SR = 0, 16, 32, 48, 64, 80
WC, AOP, EE, OH = 96, 100, 104, 108
vE, vOH, vSA, vSB, vStA, vStB, vR, vEOa, vEOk, vT, vT2, vTID = 112, 113, 114, 115, 116, 117, 118, 119, 120, 121, 122, 123

def edge_kernel(a):
    K = "edge_kernel"
    a.raw(f".globl {K}\n.p2align 8\n.type {K},@function")
    a.label(K)
    a(f"s_cmp_ge_u32 s2, {NRANGE}")
    a("s_cbranch_scc1 E_end")
    load_kernargs(a)
    a(f"v_mov_b32 v{vTID}, v0")
    a("v_lshrrev_b32 v1, 6, v0")
    a("v_and_b32 v2, 63, v0          ; lane")
    a("v_readfirstlane_b32 s3, v1")
    a("s_lshr_b32 s4, s3, 2          ; g")
    a("s_and_b32 s5, s3, 3           ; ft")
    a("s_mov_b32 s6, 0")
    a("s_mov_b32 s7, -1")
    REC, RK, RA, RB, RC2 = 32, 36, 40, 44, 48
    WF = 64
    a(f"""
    v_lshrrev_b32 v3, 5, v2       ; h
    v_and_b32 v4, 31, v2          ; m/n
    v_lshrrev_b32 v5, 4, v2       ; G
    v_and_b32 v6, 15, v2          ; i
    """)
    a(f"""
    s_mul_i32 s32, s2, {RN}
    s_lshl_b32 s33, s3, 2
    s_add_u32 s33, s33, s32
    v_add_u32 v7, s33, v5
    v_lshlrev_b32 v7, 8, v7
    v_xor_b32 v8, s3, v6
    v_lshl_add_u32 v7, v8, 4, v7
    v_lshlrev_b32 v8, 4, v0       ; t*16
    v_lshlrev_b32 v9, 4, v2       ; lane*16
    v_lshlrev_b32 v10, 3, v2      ; lane*8
    s_waitcnt lgkmcnt(0)
    """)
    a(f"s_mul_i32 s33, s2, {NCHUNK*128}")
    a(f"s_add_u32 s33, s33, {WS_CELLS:#x}")
    a("s_add_u32 s36, s30, s33\ns_addc_u32 s37, s31, 0")
    a(f"s_mov_b32 s38, {NCHUNK*128}\ns_mov_b32 s39, 0x00020000")
    a(f"buffer_load_dwordx4 {vr(REC,4)}, v8, s[36:39], 0 offen")
    srd(a, 40, 30, 31, NCHUNK*4, add=WS_OVFC)
    a("buffer_load_dwordx2 v[52:53], v10, s[40:43], 0 offen")
    srd(a, 44, 8, 9, N*256)
    a("s_lshl_b32 s33, s3, 10")
    a(f"s_add_u32 s33, s33, {L_X}")
    a("s_mov_b32 m0, s33")
    srd(a, 48, 30, 31, 0x11000, add=WS_WF)
    a("buffer_load_dwordx4 v7, s[44:47], 0 offen lds")
    a("""
    s_lshr_b32 s34, s3, 3
    s_lshl_b32 s33, s34, 15
    s_lshl_b32 s35, s5, 13
    s_add_u32 s33, s33, s35
    s_add_u32 s35, s33, 4096
    """)
    for ks in range(8):
        a(f"buffer_load_dwordx4 {vr(WF+4*ks,4)}, v9, s[48:51], s{33 if ks<4 else 35} offen offset:{(ks%4)*1024}")
    a("s_lshl_b32 s33, s5, 10")
    a("s_add_u32 s33, s33, 0x10000")
    a(f"buffer_load_dwordx4 {vr(WC,4)}, v9, s[48:51], s33 offen")
    srd(a, 52, 30, 31, 0x1800000, w3=0x00800000, add=WS_BV-128, w1or=0x00040000)
    srd(a, 56, 10, 11, E*32)
    srd(a, 60, 26, 27, N*256)
    srd(a, 64, 30, 31, WS_END - WS_OVFR, add=WS_OVFR)
    a(f"""
    v_mov_b32 v12, 0
    v_mov_b32 v13, 0
    v_mov_b32 v14, 0
    v_mov_b32 v15, 0
    v_add_u32 v11, {L_Z}, v8
    v_cmp_gt_u32 vcc, {4608//16}, v0
    s_and_saveexec_b64 s[68:69], vcc
    ds_write_b128 v11, v[12:15]
    s_mov_b64 exec, s[68:69]
    """)
    a(f"""
    v_and_b32 v11, 1, v2
    v_xor_b32 v11, v11, v3
    v_lshlrev_b32 v11, 4, v11
    v_add_u32 v{vEOk}, -32, v11
    v_and_b32 v11, 1, v5          ; G&1
    v_lshlrev_b32 v{vStA}, 12, v11
    v_sub_u32 v{vStB}, 4096, v{vStA}
    v_lshrrev_b32 v{vT2}, 3, v0
    v_lshlrev_b32 v{vT2}, 12, v{vT2}
    """)
    a.label("E_round")
    a(f"""
    v_lshlrev_b32 v56, 4, v{vTID}
    v_mov_b32 v60, 0
    v_mov_b32 v61, 0
    v_mov_b32 v62, 0
    v_mov_b32 v63, 0
    """)
    a(f"v_add_u32 v57, {L_M}, v56")
    for j in range(4):
        a(f"ds_write_b128 v57, v[60:63] offset:{j*16384}")
    a(f"""
    s_mov_b32 s34, {PADE:#x}
    s_cmp_lt_u32 s3, 8
    s_cselect_b32 s33, {PADROW:#x}, s34
    v_mov_b32 v60, s33
    v_mov_b32 v61, s33
    v_mov_b32 v62, s33
    v_mov_b32 v63, s33
    ds_write_b128 v56, v[60:63]
    """)
    a(f"""
    v_add_u32 v57, -4, v{vTID}
    v_lshlrev_b32 v58, 11, v57
    v_cmp_gt_u32 vcc, 4, v57
    v_lshlrev_b32 v59, 2, v{vTID}
    v_add_u32 v59, {L_CNT}, v59
    v_cndmask_b32 v58, 0, v58, vcc
    v_cmp_gt_u32 vcc, 12, v{vTID}
    s_and_saveexec_b64 s[68:69], vcc
    ds_write_b32 v59, v58
    s_mov_b64 exec, s[68:69]
    """)
    a(f"""
    v_and_b32 v57, 63, v{vTID}     ; lane
    v_lshrrev_b32 v58, 5, v57     ; h
    v_and_b32 v59, 31, v57        ; m
    s_lshl_b32 s33, s4, 14
    s_add_u32 s33, s33, {L_M}
    v_lshlrev_b32 v60, 5, v59
    v_lshl_add_u32 v60, v58, 4, v60
    v_add_u32 v{vOH}, s33, v60     ; M + m*32 + 16h
    v_and_b32 v60, 15, v57
    v_lshlrev_b32 v60, 3, v60     ; i*8  (= r*32 + c*8)
    v_lshl_add_u32 v60, v58, 7, v60 ; + 4h*32
    v_add_u32 v60, s33, v60
    v_xor_b32 v61, 1, v58
    v_lshlrev_b32 v61, 7, v61
    v_add_u32 v61, {L_Z}, v61
    v_cmp_eq_u32 vcc, 0, v{vStA}
    s_nop 1
    v_cndmask_b32 v{vSA}, v60, v61, vcc
    v_cndmask_b32 v{vSB}, v61, v60, vcc
    s_lshl_b32 s33, s4, 11
    v_lshlrev_b32 v60, 4, v58
    v_add_u32 v{vR}, s33, v60      ; RL + g*2048 + 16h
    s_lshl_b32 s34, s5, 7
    s_add_u32 s33, s33, s34
    s_add_u32 s33, s33, {L_EO}
    v_lshrrev_b32 v60, 1, v57
    v_lshlrev_b32 v60, 2, v60
    v_add_u32 v{vEOa}, s33, v60
    s_lshl_b32 s70, s4, 13
    s_add_u32 s70, s70, {L_E}
    v_lshrrev_b32 v60, 4, v59
    v_xor_b32 v60, v60, v58
    v_lshl_add_u32 v60, v59, 1, v60
    v_lshlrev_b32 v60, 4, v60
    v_add_u32 v{vE}, s70, v60
    s_lshl_b32 s34, s5, 10
    s_add_u32 s70, s70, s34
    v_mov_b32 v54, 4
    v_mov_b32 v55, 0x3f80
    v_mov_b32 v56, 0x80
    v_mov_b32 v57, 0xfff
    s_waitcnt lgkmcnt(0)
    s_barrier
    """)
    a("s_cmp_lg_u32 s6, 0")
    a("s_cbranch_scc1 E_w0")
    a("s_waitcnt vmcnt(11)")
    a("s_branch E_w1")
    a.label("E_w0")
    a("s_waitcnt vmcnt(0)")
    a.label("E_w1")
    for j in range(4):
        a(f"v_cmp_ne_u32 s[{72+2*j}:{73+2*j}], 0, v{REC+j}")
        a(f"v_lshrrev_b32 v{RA+j}, 23, v{REC+j}")
        a(f"v_and_b32 v{RA+j}, 0x1c, v{RA+j}")
        a(f"v_add_u32 v{RA+j}, {L_CNT}, v{RA+j}")
        a(f"s_mov_b64 exec, s[{72+2*j}:{73+2*j}]")
        a(f"ds_add_rtn_u32 v{RK+j}, v{RA+j}, v54 offset:16")
        a("s_mov_b64 exec, -1")
    for j in range(4):
        a(f"v_lshrrev_b32 v{RB+j}, 28, v{REC+j}")
        a(f"v_and_or_b32 v{RC2+j}, v{REC+j}, v57, v{vT2}")
    a("s_waitcnt lgkmcnt(0)")
    a("s_barrier")
    a(f"v_mov_b32 v58, {L_CNT}")
    for j in range(4):
        a(f"ds_read_b32 v{RA+j}, v{RA+j}")
    a(f"ds_read_b128 v[{G}:{G+3}], v58 offset:16")
    a(f"ds_read_b128 v[{G+4}:{G+7}], v58 offset:32")
    for j in range(4):
        a(f"v_lshrrev_b32 v{60+j}, 3, v{REC+j}")
        a(f"v_and_b32 v{60+j}, 0x013ffe00, v{60+j}")
    a("s_waitcnt lgkmcnt(0)")
    for j in range(4):
        a(f"v_add_u32 v{G+j}, v{G+j}, v{G+4+j}")
        a(f"v_add_u32 v{RK+j}, v{RK+j}, v{RA+j}       ; gp4")
    for j in range(4):
        a(f"v_readfirstlane_b32 s{80+j}, v{G+j}")
    a("""
    s_nop 0
    s_sub_u32 s81, s81, 2048
    s_sub_u32 s82, s82, 4096
    s_sub_u32 s83, s83, 6144
    s_max_u32 s84, s80, s81
    s_max_u32 s85, s82, s83
    s_max_u32 s84, s84, s85       ; max n4
    s_cmp_eq_u32 s4, 1
    s_cselect_b32 s80, s81, s80
    s_cmp_eq_u32 s4, 2
    s_cselect_b32 s80, s82, s80
    s_cmp_eq_u32 s4, 3
    s_cselect_b32 s80, s83, s80   ; own n4
    s_mov_b32 s86, 0
    s_cmp_gt_u32 s84, 2048
    s_cbranch_scc0 E_nopend
    """)
    a("s_mov_b32 s86, 1")
    a("s_min_u32 s84, s84, 2048")
    a("s_min_u32 s80, s80, 2048")
    for j in range(4):
        a(f"v_lshrrev_b32 v58, 14, v{REC+j}")
        a(f"v_and_b32 v58, 0x1800, v58")
        a(f"v_add_u32 v58, 2048, v58        ; limit")
        a(f"v_cmp_lt_u32 vcc, v{RK+j}, v58")
        a(f"s_and_b64 s[{72+2*j}:{73+2*j}], s[{72+2*j}:{73+2*j}], vcc")
        a("s_nop 1")
        a(f"v_cndmask_b32 v{G+8+j}, v{REC+j}, 0, s[{72+2*j}:{73+2*j}]")
    a(f"""
    s_lshl_b32 s33, s2, 14
    s_add_u32 s33, s33, {WS_PEND - WS_OVFR:#x}
    v_lshlrev_b32 v58, 4, v{vTID}
    buffer_store_dwordx4 v[{G+8}:{G+11}], v58, s[64:67], s33 offen
    s_waitcnt vmcnt(0)
    """)
    a.label("E_nopend")
    for j in range(4):
        a(f"v_lshlrev_b32 v58, 3, v{RK+j}")
        a(f"v_lshl_add_u32 v58, v{RB+j}, 1, v58")
        a(f"v_bitop3_b32 v{60+j}, v58, v56, v{60+j} bitop3:0xae   ; c | (~a & b)")
        a(f"s_mov_b64 exec, s[{72+2*j}:{73+2*j}]")
        a(f"ds_write2st64_b32 v{RK+j}, v{60+j}, v{RC2+j} offset0:0 offset1:32")
        a(f"ds_write_b16 v58, v55 offset:{L_M}")
        a("s_mov_b64 exec, -1")
    a("""
    s_add_u32 s80, s80, 127
    s_lshr_b32 s80, s80, 7        ; T_g tiles
    s_add_u32 s84, s84, 511
    s_lshr_b32 s84, s84, 9        ; stages
    """)
    a("s_waitcnt vmcnt(9) lgkmcnt(0)")
    a("s_barrier")
    a("s_cmp_lg_u32 s6, 0")
    a("s_cbranch_scc1 E_skipov")
    a("v_or_b32 v52, v52, v53")
    a("v_cmp_ne_u32 s[88:89], 0, v52")
    a.label("E_skipov")
    for j in range(4):
        a(f"ds_read_b128 {vr(G+4*j,4)}, v{vR} offset:{j*32}")
    a(f"ds_read_b32 v{vT}, v{vEOa}")
    a(f"ds_read_b32 v{BV1}, v{vEOa} offset:512")
    a("s_mov_b32 s87, 102400")
    a("s_lshl_b32 s71, s5, 7")
    a("s_waitcnt lgkmcnt(2)")
    for r in range(16):
        a(f"buffer_load_dword v{BV0+r}, v{G+r}, s[52:55], s71 offen")
    def eo_calc(src, tmp):
        a(f"v_lshrrev_b32 v{tmp}, 12, v{src}")
        a(f"v_and_b32 v{src}, 0xfff, v{src}")
        a(f"v_lshl_add_u32 v{src}, v{src}, 5, v{vEOk}")
        a(f"v_mad_u32_u24 v{src}, v{tmp}, s87, v{src}")
    a("s_waitcnt lgkmcnt(0)")
    eo_calc(vT, BV1+1)
    a("s_mov_b32 m0, s70")
    a("s_nop 0")
    a(f"buffer_load_dwordx4 v{vT}, s[56:59], 0 offen lds")
    eo_calc(BV1, BV1+1)
    a(f"v_mov_b32 v{vT}, v{BV1}")
    a("s_cmp_lg_u32 s6, 0")
    a("s_cbranch_scc1 E_nogemm")
    a(f"""
    v_and_b32 v1, 63, v{vTID}
    v_lshrrev_b32 v3, 5, v1       ; h
    v_and_b32 v4, 15, v1          ; s0
    v_bfe_u32 v5, v1, 4, 1        ; rho>>4
    v_and_b32 v6, 3, v4
    v_bfe_u32 v7, v4, 2, 1
    v_bfe_u32 v8, v4, 3, 1
    v_lshl_or_b32 v6, v7, 3, v6
    v_lshl_or_b32 v6, v8, 2, v6   ; swapped
    s_cmp_lt_u32 s3, 8
    s_cselect_b64 s[68:69], -1, 0
    s_cselect_b32 s34, {NEG_LOG2E:#x}, 1.0
    v_cndmask_b32 v4, v4, v6, s[68:69]   ; slot
    s_and_b32 s33, s4, 1
    s_lshl_b32 s33, s33, 1        ; 2gp
    v_add_u32 v5, s33, v5         ; group
    v_lshl_add_u32 v5, v4, 2, v5  ; row
    v_xor_b32 v4, v4, v3
    v_lshlrev_b32 v4, 4, v4
    v_lshl_or_b32 v4, v5, 8, v4
    v_add_u32 v4, {L_X}, v4
    """)
    def xf(ks): return (G + 4*ks) if ks < 4 else (BV1 + 4*(ks-4))
    for ks in range(8):
        a(f"v_xor_b32 v5, {ks<<5}, v4")
        a(f"ds_read_b128 {vr(xf(ks),4)}, v5")
    a(f"""
    s_lshl_b32 s35, s5, 10
    s_lshl_b32 s90, s33, 13
    s_add_u32 s90, s90, {L_E + 4096}
    s_lshl_b32 s91, s33, 12
    s_add_u32 s91, s91, {L_U}
    s_cmp_lt_u32 s3, 8
    s_cselect_b32 s90, s90, s91
    s_cselect_b32 s91, 2, 1
    s_lshl_b32 s91, s91, 12
    s_add_u32 s90, s90, s35
    v_lshlrev_b32 v{EE}, 4, v1
    v_add_u32 v{EE}, s90, v{EE}
    v_add_u32 v{EE+1}, s91, v{EE}
    s_waitcnt vmcnt(17) lgkmcnt(0)
    """)
    for ks in range(8):
        c = "0" if ks == 0 else vr(ACC,16)
        a(f"v_mfma_f32_32x32x16_bf16 {vr(ACC,16)}, {vr(xf(ks),4)}, {vr(WF+4*ks,4)}, {c}")
    a(f"""
    v_and_b32 v{OH}, 63, v{vTID}
    v_lshrrev_b32 v{OH+1}, 5, v{OH}
    v_bfe_u32 v{OH+2}, v{OH}, 2, 1
    v_xor_b32 v{OH+1}, v{OH+1}, v{OH+2}
    v_bfe_u32 v{OH+2}, v{OH}, 3, 2
    v_and_b32 v{OH}, 3, v{OH}
    v_lshl_or_b32 v{OH}, v{OH+2}, 2, v{OH}   ; 4q+j
    v_lshl_or_b32 v{OH}, v{OH+1}, 4, v{OH}
    v_mov_b32 v{OH+1}, 0x3f80
    """)
    for q in range(16):
        a(f"v_cmp_eq_u32 vcc, {q}, v{OH}")
        a("s_nop 1")
        a(f"v_cndmask_b32 v{SEL+q}, 0, v{OH+1}, vcc")
    for r in range(16):
        a(f"v_mul_f32 v{ACC+r}, s34, v{ACC+r}")
    for r in range(8):
        a(f"v_cvt_pk_bf16_f32 v{G+r}, v{ACC+2*r}, v{ACC+2*r+1}")
    a(f"ds_write_b128 v{EE}, {vr(G,4)}")
    a(f"ds_write_b128 v{EE+1}, {vr(G+4,4)}")
    for r in range(16):
        a(f"v_mov_b32 v{ACC+r}, 0")
    a.label("E_nogemm")
    a("s_waitcnt vmcnt(0) lgkmcnt(0)")
    a("s_barrier")
    a("s_cmp_lg_u32 s6, 0")
    a("s_cbranch_scc1 E_noaop")
    a(f"v_and_b32 v{G}, 63, v{vTID}")
    a(f"v_lshlrev_b32 v{G}, 4, v{G}")
    a(f"v_add_u32 v{G}, s70, v{G}")
    a(f"ds_read_b128 {vr(AOP,4)}, v{G} offset:4096")
    a.label("E_noaop")
    a(f"ds_read_b128 {vr(EE,4)}, v{vE}")
    a(f"ds_read_b128 {vr(OH,4)}, v{vOH}")
    for j in range(4):
        a(f"ds_read_b128 {vr(SR+4*j,4)}, v{vR} offset:{128 + j*32}")
    a("s_xor_b32 s70, s70, 4096")
    a("s_mov_b32 m0, s70")
    a("s_waitcnt lgkmcnt(0)")
    a(f"buffer_load_dwordx4 v{vT}, s[56:59], 0 offen lds")
    a("s_mov_b32 s92, 0")
    a("s_mov_b32 s93, 0               ; stage")
    a("s_cmp_eq_u32 s84, 0")
    a("s_cbranch_scc1 E_done")
    a.label("E_stage")
    for k in range(4):
        cur = BV0 if k % 2 == 0 else BV1
        nxt = BV1 if k % 2 == 0 else BV0
        if k == 2:
            a(f"ds_read_b32 v{vT}, v{vEOa} offset:1024")
        a("s_cmp_lt_u32 s92, s80")
        a(f"s_cbranch_scc0 E_skipA{k}")
        a("s_waitcnt lgkmcnt(0)")
        a(f"v_mfma_f32_32x32x16_bf16 {vr(G,16)}, {vr(EE,4)}, {vr(WC,4)}, 0")
        a(f"v_mfma_f32_32x32x16_bf16 {vr(G,16)}, {vr(OH,4)}, {vr(AOP,4)}, {vr(G,16)}")
        for r in range(16):
            a(f"buffer_load_dword v{nxt+r}, v{SR+r}, s[52:55], s71 offen")
        if k == 3:
            a(f"s_branch E_bar")
            a.label(f"E_skipA{k}")
            a("s_waitcnt vmcnt(0) lgkmcnt(0)")
            a.label("E_bar")
            eo_calc(vT, vT2)
            a("s_add_u32 s33, s93, 2")
            a("s_cmp_ge_u32 s33, s84")
            a("s_cselect_b32 s33, 0x40000000, 0")
            a(f"v_or_b32 v{vT}, s33, v{vT}")
            a("s_xor_b32 s70, s70, 4096")
            a("s_mov_b32 m0, s70")
            a("s_barrier")
            a(f"buffer_load_dwordx4 v{vT}, s[56:59], 0 offen lds")
            a("s_cmp_lt_u32 s92, s80")
            a(f"s_cbranch_scc0 E_skipB{k}")
        a(f"s_waitcnt vmcnt({17 if k in (0,3) else 16})")
        for q in range(4):
            a(f"v_mfma_f32_32x32x16_bf16 {vr(G,16)}, {vr(SEL+4*q,4)}, {vr(cur+4*q,4)}, {vr(G,16)}")
        for q in range(4):
            a(f"ds_read_b64_tr_b16 {vr(SR+4*q,2)}, v{vSA} offset:{k*1024+q*256}")
            a(f"ds_read_b64_tr_b16 {vr(SR+4*q+2,2)}, v{vSB} offset:{k*1024+q*256}")
        if k == 3:
            a(f"v_xor_b32 v{vE}, 4096, v{vE}")
            a(f"ds_read_b128 {vr(EE,4)}, v{vE}")
        else:
            a(f"ds_read_b128 {vr(EE,4)}, v{vE} offset:{(k+1)*1024}")
        a(f"ds_read_b128 {vr(OH,4)}, v{vOH} offset:{(k+1)*1024}")
        a("s_nop 1")
        for r in range(16): a(f"v_exp_f32 v{G+r}, v{G+r}")
        for r in range(16): a(f"v_add_f32 v{G+r}, 1.0, v{G+r}")
        for r in range(16): a(f"v_rcp_f32 v{G+r}, v{G+r}")
        for r in range(16): a(f"v_mul_f32 v{cur+r}, v{G+r}, v{cur+r}")
        def cvt(q):
            b = G + 4*q; p = cur + 4*q
            a(f"v_cvt_pk_bf16_f32 v{b}, v{b}, v{b+1}")
            a(f"v_cvt_pk_bf16_f32 v{b+1}, v{b+2}, v{b+3}")
            a(f"v_cvt_pk_bf16_f32 v{b+2}, v{p}, v{p+1}")
            a(f"v_cvt_pk_bf16_f32 v{b+3}, v{p+2}, v{p+3}")
        def red(q):
            a(f"v_mfma_f32_32x32x16_bf16 {vr(ACC,16)}, {vr(SR+4*q,4)}, {vr(G+4*q,4)}, {vr(ACC,16)}")
        def rread(q):
            a(f"ds_read_b128 {vr(SR+4*q,4)}, v{vR} offset:{(k+2)*128 + q*32}")
        cvt(0); cvt(1)
        a("s_waitcnt lgkmcnt(0)")
        red(0); cvt(2); rread(0); red(1); cvt(3); rread(1); red(2); rread(2)
        red(3); rread(3)
        if k != 3:
            a.label(f"E_skipA{k}")
        else:
            a.label(f"E_skipB{k}")
        a("s_add_u32 s92, s92, 1")
    a(f"""
    v_add_u32 v{vOH}, 4096, v{vOH}
    v_add_u32 v{vSA}, v{vStA}, v{vSA}
    v_add_u32 v{vSB}, v{vStB}, v{vSB}
    v_add_u32 v{vR}, 512, v{vR}
    v_add_u32 v{vEOa}, 512, v{vEOa}
    s_add_u32 s93, s93, 1
    s_cmp_lt_u32 s93, s84
    s_cbranch_scc1 E_stage
    """)
    a.label("E_done")
    a("s_cmp_lg_u32 s86, 0")
    a("s_cbranch_scc1 E_more_pend")
    a("s_cmp_eq_u64 s[88:89], 0")
    a("s_cbranch_scc1 E_epi")
    a.label("E_nextchunk")
    a(f"""
    s_add_u32 s7, s7, 1
    s_cmp_ge_u32 s7, {NCHUNK}
    s_cbranch_scc1 E_epi
    s_lshl_b32 s33, s7, 2
    s_buffer_load_dword s34, s[40:43], s33
    s_waitcnt lgkmcnt(0)
    s_cmp_eq_u32 s34, 0
    s_cbranch_scc1 E_nextchunk
    s_waitcnt vmcnt(0) lgkmcnt(0)
    s_mul_i32 s33, s7, {CH*4}
    s_add_u32 s35, s33, {WS_OVFG - WS_OVFR:#x}
    v_lshlrev_b32 v58, 4, v{vTID}
    buffer_load_dwordx4 {vr(REC,4)}, v58, s[64:67], s33 offen
    buffer_load_dwordx4 {vr(RK,4)}, v58, s[64:67], s35 offen
    v_lshlrev_b32 v59, 2, v{vTID}
    s_waitcnt vmcnt(0)
    """)
    for j in range(4):
        a(f"v_add_u32 v58, {j}, v59")
        a(f"v_cmp_gt_u32 vcc, s34, v58")
        a(f"v_cmp_eq_u32 s[68:69], s2, v{RK+j}")
        a("s_and_b64 vcc, vcc, s[68:69]")
        a("s_nop 1")
        a(f"v_cndmask_b32 v{REC+j}, 0, v{REC+j}, vcc")
    a("s_branch E_again")
    a.label("E_more_pend")
    a(f"""
    s_waitcnt vmcnt(0) lgkmcnt(0)
    s_lshl_b32 s33, s2, 14
    s_add_u32 s33, s33, {WS_PEND - WS_OVFR:#x}
    v_lshlrev_b32 v58, 4, v{vTID}
    buffer_load_dwordx4 {vr(REC,4)}, v58, s[64:67], s33 offen
    """)
    a.label("E_again")
    a(f"""
    v_lshrrev_b32 v{vT2}, 3, v{vTID}
    v_mov_b32 v58, s7
    s_cmp_eq_u32 s7, -1
    s_cselect_b64 s[68:69], -1, 0
    s_nop 1
    v_cndmask_b32 v{vT2}, v58, v{vT2}, s[68:69]
    v_lshlrev_b32 v{vT2}, 12, v{vT2}
    s_mov_b32 s6, 1
    s_waitcnt vmcnt(0) lgkmcnt(0)
    s_barrier
    s_branch E_round
    """)
    a.label("E_epi")
    a(f"""
    v_and_b32 v{G}, 63, v{vTID}
    v_lshrrev_b32 v{G+1}, 5, v{G}       ; h
    v_and_b32 v{G+2}, 31, v{G}          ; n
    s_lshl_b32 s33, s3, 10
    s_add_u32 s33, s33, {L_U}
    v_lshlrev_b32 v{G+3}, 4, v{G}
    v_add_u32 v{G+3}, s33, v{G+3}
    s_waitcnt vmcnt(0) lgkmcnt(0)
    ds_read_b128 {vr(EE,4)}, v{G+3}
    v_lshrrev_b32 v{G+3}, 3, v{G+2}
    s_lshl_b32 s33, s5, 2
    v_add_u32 v{G+3}, s33, v{G+3}       ; chunk
    v_lshlrev_b32 v{G+4}, 2, v{G+1}     ; 4h
    v_xor_b32 v{G+3}, v{G+3}, v{G+4}
    v_lshlrev_b32 v{G+3}, 4, v{G+3}
    v_and_b32 v{G+5}, 7, v{G+2}
    v_lshl_add_u32 v{G+3}, v{G+5}, 1, v{G+3}
    v_lshl_add_u32 v{G+3}, v{G+4}, 10, v{G+3}
    s_lshl_b32 s33, s4, 8
    s_add_u32 s33, s33, {L_X}
    v_add_u32 v{G+3}, s33, v{G+3}
    """)
    for r in range(8):
        s_ = (r//4)*8 + r%4
        a(f"v_xor_b32 v{G+5}, {s_<<4}, v{G+3}")
        a(f"ds_read_u16 v{BV0+r}, v{G+5} offset:{s_*1024}")
    a(f"""
    s_mul_i32 s33, s2, {RN}
    s_add_u32 s33, s33, s4
    s_lshl_b32 s33, s33, 8
    s_lshl_b32 s34, s5, 6
    s_add_u32 s33, s33, s34
    v_lshlrev_b32 v{G+6}, 12, v{G+1}
    v_lshl_add_u32 v{G+6}, v{G+2}, 1, v{G+6}
    v_add_u32 v{G+6}, s33, v{G+6}
    v_add_u32 v{G+7}, 8192, v{G+6}
    """)
    for r in range(8):
        a(f"v_add_f32 v{ACC+8+r}, {EPS:#x}, v{ACC+8+r}")
    for r in range(8):
        a(f"v_rcp_f32 v{ACC+8+r}, v{ACC+8+r}")
    a("s_waitcnt lgkmcnt(0)")
    for r in range(8):
        if r % 2 == 0: a(f"v_lshlrev_b32 v{BV1+r}, 16, v{EE+r//2}")
        else: a(f"v_and_b32 v{BV1+r}, 0xffff0000, v{EE+r//2}")
        a(f"v_lshlrev_b32 v{BV0+r}, 16, v{BV0+r}")
    for r in range(8):
        a(f"v_fma_f32 v{ACC+r}, v{ACC+r}, v{ACC+8+r}, v{BV1+r}")
        a(f"v_max_f32 v{ACC+r}, 0, v{ACC+r}")
        a(f"v_add_f32 v{ACC+r}, v{ACC+r}, v{BV0+r}")
        a(f"v_cvt_pk_bf16_f32 v{ACC+r}, v{ACC+r}, v{ACC+r}")
    for r in range(8):
        if r == 4:
            a("s_cmp_eq_u32 s4, 0")
            a("s_cselect_b32 exec_hi, -1, 0")
        if r == 5:
            a("s_mov_b32 exec_hi, 0")
        a(f"buffer_store_short v{ACC+r}, v{G+6 + r//4}, s[60:63], 0 offen offset:{(r%4)*1024}")
    a.label("E_end")
    a("s_endpgm")

def desc(a, name, vg, sg):
    a.raw(f""".amdhsa_kernel {name}
  .amdhsa_next_free_vgpr {vg}
  .amdhsa_next_free_sgpr {sg}
  .amdhsa_accum_offset {vg}
  .amdhsa_group_segment_fixed_size 0
  .amdhsa_kernarg_size 96
  .amdhsa_user_sgpr_count 2
  .amdhsa_user_sgpr_kernarg_segment_ptr 1
  .amdhsa_system_sgpr_workgroup_id_x 1
.end_amdhsa_kernel""")

def main(out):
    a = Asm()
    a.raw(f"; @launch kernel=prep_kernel grid=({NCHUNK+NGEMM+1},1,1) block=(512,1,1) lds=81920")
    a.raw(f"; @launch kernel=edge_kernel grid=({NRANGE},1,1) block=(1024,1,1) lds={L_TOT}")
    a.raw('.amdgcn_target "amdgcn-amd-amdhsa--gfx950"')
    a.raw(".text")
    prep_kernel(a)
    edge_kernel(a)
    a.raw('.section .rodata,"a"')
    a.raw(".p2align 6")
    desc(a, "prep_kernel", 128, 96)
    a.raw(".p2align 6")
    desc(a, "edge_kernel", 128, 96)
    open(out, "w").write(a.text())

if __name__ == "__main__":
    main(sys.argv[1] if len(sys.argv) > 1 else f"cdna_kernels/{NAME}.s")
```

```python
import sys, struct

NAME = "standalone__edge_featured_mpnn_gatedgcn__graph"
N, E = 12500, 400000
NCHUNK, CH = 125, 3200
NRANGE, RN = 256, 49
BLK = 3136
NGEMM = 196
WS_BV    = 0x1000
BOFF     = 0x2000000
BVSPAN   = 3*BOFF + 0x400000
WS_MISC  = 0x800000
WS_CELLS = WS_MISC
WS_OVFC  = WS_CELLS + 0x400000
WS_OVFR  = WS_OVFC + 0x1000
WS_OVFG  = WS_OVFR + 0x200000
WS_WF    = WS_OVFG + 0x200000
WS_WC    = WS_WF + 0x10000
WS_PEND  = WS_WC + 0x1000
WS_END   = WS_PEND + 0x400000
NEG_LOG2E = struct.unpack('<I', struct.pack('<f', -1.4426950408889634))[0]
EPS = struct.unpack('<I', struct.pack('<f', 1e-6))[0]

OPT = set(sys.argv[2:])
TSREG = [124]
WS_TS = 0x9000000
def stamp(a, idx, kern):
    if 'ts' not in OPT: return
    a("s_memtime s[100:101]")
    a("s_waitcnt lgkmcnt(0)")
    a(f"v_writelane_b32 v{TSREG[0]}, s100, {idx}")
def stamp_rt(a, idx, kern):
    if 'ts' not in OPT: return
    a("s_memrealtime s[100:101]")
    a("s_waitcnt lgkmcnt(0)")
    a(f"v_writelane_b32 v{TSREG[0]}, s100, {idx}")
def stamp_flush(a, kern):
    if 'ts' not in OPT: return
    v = TSREG[0]
    a("s_mov_b64 exec, -1")
    stamp(a, 14, kern); stamp_rt(a, 15, kern)
    srd(a, 88, 30, 31, 0x1000000, add=WS_TS + kern*0x800000)
    a(f"s_lshl_b32 s100, s2, 4")
    a(f"s_add_u32 s100, s100, s3")
    a(f"s_lshl_b32 s100, s100, 6")
    a(f"v_mbcnt_lo_u32_b32 v1, -1, 0")
    a(f"v_lshlrev_b32 v1, 2, v1")
    a("s_mov_b64 exec, 0xffff")
    a(f"buffer_store_dword v{v}, v1, s[88:91], s100 offen")

class Asm:
    def __init__(self): self.l = []
    def __call__(self, s):
        for x in s.strip('\n').split('\n'):
            self.l.append(x if x.rstrip().endswith(':') and not x.startswith(' ') else '    ' + x.strip())
    def label(self, s): self.l.append(s + ':')
    def raw(self, s): self.l.append(s)
    def text(self): return '\n'.join(self.l) + '\n'

def vr(a, n): return f"v[{a}:{a+n-1}]"
def sr(a, n): return f"s[{a}:{a+n-1}]"

def srd(a, d, lo, hi, nbytes, w3=0x00020000, add=0, w1or=0):
    if add:
        a(f"s_add_u32 s{d}, s{lo}, {add:#x}")
        a(f"s_addc_u32 s{d+1}, s{hi}, 0")
    else:
        a(f"s_mov_b32 s{d}, s{lo}")
        a(f"s_mov_b32 s{d+1}, s{hi}")
    if w1or: a(f"s_or_b32 s{d+1}, s{d+1}, {w1or:#x}")
    a(f"s_mov_b32 s{d+2}, {nbytes:#x}")
    a(f"s_mov_b32 s{d+3}, {w3:#x}")

def load_kernargs(a):
    a("s_load_dwordx16 s[8:23], s[0:1], 0")
    a("s_load_dwordx8 s[24:31], s[0:1], 64")

def prep_kernel(a):
    K = "prep_kernel"
    a.raw(f".globl {K}\n.p2align 8\n.type {K},@function")
    a.label(K)
    a(f"s_cmp_ge_u32 s2, {NCHUNK+NGEMM+1}")
    a("s_cbranch_scc1 P_end")
    TSREG[0] = 128
    stamp_rt(a, 0, 0); stamp(a, 1, 0)
    load_kernargs(a)
    a("v_lshrrev_b32 v1, 6, v0")
    a("v_and_b32 v2, 63, v0          ; lane")
    a("v_readfirstlane_b32 s3, v1")
    a(f"s_cmp_lt_u32 s2, {NCHUNK}")
    a("s_cbranch_scc1 P_bin")
    a(f"s_sub_u32 s4, s2, {NCHUNK}     ; b")
    a("""
    v_lshrrev_b32 v3, 4, v2       ; row_in
    v_and_b32 v4, 15, v2          ; c
    v_lshlrev_b32 v5, 2, v3
    v_xor_b32 v5, v4, v5
    v_lshlrev_b32 v5, 4, v5
    v_lshl_or_b32 v5, v3, 8, v5
    """)
    a("""
    s_lshl_b32 s5, s3, 3          ; 8w
    v_add_u32 v6, s5, v3          ; row (j=0)
    v_and_b32 v7, 15, v6
    v_xor_b32 v7, v4, v7          ; chunk j=0
    v_xor_b32 v8, 4, v7
    s_lshl_b32 s6, s4, 6          ; b*64
    v_add_u32 v6, s6, v6
    v_lshlrev_b32 v6, 8, v6
    v_lshl_add_u32 v7, v7, 4, v6  ; voffset j=0
    v_lshl_add_u32 v8, v8, 4, v6
    s_waitcnt lgkmcnt(0)
    """)
    stamp(a, 2, 0)
    a(f"s_cmp_eq_u32 s4, {NGEMM}")
    a("s_cselect_b32 s32, s16, s18   ; w_a : w_b")
    a("s_cselect_b32 s33, s17, s19")
    a("s_cselect_b32 s36, s22, s24   ; w_u : w_v")
    a("s_cselect_b32 s37, s23, s25")
    a("s_mov_b32 s34, 0x8000\ns_mov_b32 s35, 0x00020000\ns_mov_b32 s38, 0x8000\ns_mov_b32 s39, 0x00020000")
    srd(a, 40, 8, 9, N*256)
    a("s_lshl_b32 s7, s3, 12         ; w*4096")
    a("s_lshl_b32 s44, s3, 11        ; w*2048")
    a("s_add_u32 s44, s44, 0x10000")
    a("s_mov_b32 m0, s44")
    a("s_nop 0")
    a("buffer_load_dwordx4 v7, s[40:43], 0 offen lds")
    a("buffer_load_dwordx4 v8, s[40:43], 0 offen offset:1024 lds")
    a("s_mov_b32 m0, s7")
    a("s_add_u32 s44, s7, 0x8000")
    for j in range(4):
        a(f"buffer_load_dwordx4 v5, s[32:35], s7 offen offset:{j*1024} lds")
    a("s_mov_b32 m0, s44")
    a("s_nop 0")
    for j in range(4):
        a(f"buffer_load_dwordx4 v5, s[36:39], s7 offen offset:{j*1024} lds")
    a("""
    s_and_b32 s45, s3, 3          ; ft
    s_lshr_b32 s46, s3, 2         ; mt
    v_lshrrev_b32 v9, 1, v3       ; h
    v_lshrrev_b32 v10, 2, v4      ; r
    v_and_b32 v11, 3, v4          ; c
    v_and_b32 v12, 1, v3          ; G&1
    v_lshlrev_b32 v12, 1, v12
    v_lshrrev_b32 v13, 1, v11
    v_add_u32 v12, v12, v13       ; 2(G&1)+(c>>1)
    s_lshl_b32 s47, s45, 2
    v_add_u32 v12, s47, v12       ; chunk16
    v_lshlrev_b32 v13, 2, v10
    v_xor_b32 v12, v12, v13       ; swizzled
    v_lshlrev_b32 v12, 4, v12
    v_and_b32 v13, 1, v11
    v_lshl_add_u32 v12, v13, 3, v12
    v_lshl_add_u32 v13, v9, 3, v10 ; 8h+r
    v_lshl_add_u32 v12, v13, 8, v12
    v_and_b32 v13, 31, v2         ; m / n
    s_lshl_b32 s47, s46, 5
    v_add_u32 v14, s47, v13       ; 32mt+m
    v_lshlrev_b32 v14, 8, v14
    v_xor_b32 v15, v9, v4         ; h ^ (m&15)
    v_lshl_or_b32 v14, v15, 4, v14
    v_add_u32 v14, 0x10000, v14   ; v14 = x base
    """)
    a(f"""
    s_mul_i32 s48, s4, 21400
    s_lshr_b32 s48, s48, 20       ; block = b/49
    s_mul_i32 s48, s48, {BOFF - BLK*512:#x}
    s_lshl_b32 s49, s4, 15        ; b*64*512
    s_add_u32 s48, s48, s49
    s_lshl_b32 s49, s46, 14       ; mt*32*512
    s_add_u32 s48, s48, s49
    s_lshl_b32 s49, s45, 7
    s_add_u32 s48, s48, s49
    v_lshlrev_b32 v15, 11, v9     ; 4h*512
    v_lshl_add_u32 v15, v13, 2, v15
    v_add_u32 v15, s48, v15
    """)
    srd(a, 52, 30, 31, BVSPAN, add=WS_BV)
    a("s_mov_b32 s56, 4096\ns_mov_b32 s57, 8192\ns_mov_b32 s58, 12288")
    a(f"s_mov_b32 s59, {NEG_LOG2E:#x}")
    a("s_mov_b32 s60, 0x07060100\ns_mov_b32 s61, 0x07060302")
    stamp(a, 3, 0)
    a("s_waitcnt vmcnt(0)")
    stamp(a, 4, 0)
    a("s_barrier")
    stamp(a, 5, 0)
    WB, WV, AB, AV, XA = 16, 48, 80, 96, 112
    def xread(ks):
        a(f"v_xor_b32 v11, {ks<<5}, v14")
        a(f"ds_read_b128 {vr(XA+4*(ks%4),4)}, v11")
    for ks in range(8):
        if ks < 4: xread(ks)
        for mat, base in ((0, WB), (1, WV)):
            for p in range(2):
                a(f"ds_read_b64_tr_b16 {vr(base+4*ks+2*p,2)}, v12 offset:{mat*32768+ks*4096+p*1024}")
    a(f"s_cmp_eq_u32 s4, {NGEMM}")
    a("s_cbranch_scc1 P_wfrag")
    a("s_waitcnt lgkmcnt(0)")
    for ks in range(8):
        cB = "0" if ks == 0 else vr(AB,16)
        cV = "0" if ks == 0 else vr(AV,16)
        if ks >= 4: a(f"s_waitcnt lgkmcnt({7-ks})")
        a(f"v_mfma_f32_32x32x16_bf16 {vr(AB,16)}, {vr(XA+4*(ks%4),4)}, {vr(WB+4*ks,4)}, {cB}")
        a(f"v_mfma_f32_32x32x16_bf16 {vr(AV,16)}, {vr(XA+4*(ks%4),4)}, {vr(WV+4*ks,4)}, {cV}")
        if ks < 4: xread(ks+4)
    a("s_nop 10")
    stamp(a, 6, 0)
    for r in range(16):
        a(f"v_mul_f32 v{AB+r}, s59, v{AB+r}")
    for r in range(16):
        a(f"v_add_f32 v{AV+r}, 0, v{AV+r}")
    for r in range(0, 16, 2):
        a(f"v_cvt_pk_bf16_f32 v{AB+r}, v{AB+r}, v{AB+r+1}")
    for r in range(16):
        a(f"v_add_u32 v{AV+r}, 0x8000, v{AV+r}")
    for r in range(16):
        w = "WORD_0" if r % 2 == 0 else "WORD_1"
        a(f"v_sub_u32_sdwa v{AV+r}, v{AV+r}, v{AB+(r&~1)} clamp dst_sel:DWORD dst_unused:UNUSED_PAD src0_sel:DWORD src1_sel:{w}")
    for r in range(16):
        a(f"v_perm_b32 v{AV+r}, v{AV+r}, v{AB+(r&~1)}, s{60 + (r&1)}")
    for r in range(16):
        so = "0" if r//4 == 0 else f"s{55 + r//4}"
        if r == 0: stamp(a, 7, 0)
        a(f"buffer_store_dword v{AV+r}, v15, s[52:55], {so} offen offset:{(r%4)*512}")
    stamp(a, 8, 0)
    if 'ts' in OPT: a("s_waitcnt vmcnt(0)")
    stamp_flush(a, 0)
    a("s_endpgm")
    a.label("P_wfrag")
    a(f"""
    v_lshlrev_b32 v80, 4, v2
    v_add_u32 v80, {3*BOFF + BLK*512:#x}, v80
    v_mov_b32 v84, 0x7f7f
    v_mov_b32 v85, 0x7f7f
    v_mov_b32 v86, 0x7f7f
    v_mov_b32 v87, 0x7f7f
    buffer_store_dwordx4 v[84:87], v80, s[52:55], 0 offen
    s_nop 1
    """)
    srd(a, 52, 30, 31, 0x11000, add=WS_WF)
    srd(a, 40, 20, 21, 4096)
    a("""
    s_lshl_b32 s47, s3, 13        ; (mat*4+ft)*8192
    v_lshlrev_b32 v80, 4, v2
    v_add_u32 v81, s47, v80
    v_add_u32 v82, 4096, v81
    v_lshlrev_b32 v83, 11, v9     ; 8h*256
    v_lshl_add_u32 v83, v13, 1, v83
    s_lshl_b32 s47, s45, 6
    v_add_u32 v83, s47, v83
    """)
    for j in range(8):
        a(f"buffer_load_ushort v{84+j}, v83, s[40:43], 0 offen offset:{j*256}")
    a("s_waitcnt lgkmcnt(0)")
    a("s_cmp_eq_u32 s46, 0")
    a("s_cbranch_scc0 P_wf1")
    for ks in range(8):
        a(f"buffer_store_dwordx4 {vr(WB+4*ks,4)}, v{81 + ks//4}, s[52:55], 0 offen offset:{(ks%4)*1024}")
    a("s_waitcnt vmcnt(8)")
    for j in range(8):
        a(f"v_lshlrev_b32 v{84+j}, 16, v{84+j}")
    for j in range(8):
        a(f"v_mul_f32 v{84+j}, s59, v{84+j}")
    for j in range(4):
        a(f"v_cvt_pk_bf16_f32 v{92+j}, v{84+2*j}, v{85+2*j}")
    a("s_lshl_b32 s47, s45, 10")
    a("s_add_u32 s47, s47, 0x10000")
    a("buffer_store_dwordx4 v[92:95], v80, s[52:55], s47 offen")
    a("s_endpgm")
    a.label("P_wf1")
    for ks in range(8):
        a(f"buffer_store_dwordx4 {vr(WV+4*ks,4)}, v{81 + ks//4}, s[52:55], 0 offen offset:{(ks%4)*1024}")
    a("s_endpgm")
    a.label("P_bin")
    a("""
    v_lshlrev_b32 v3, 4, v0       ; t*16
    v_mov_b32 v4, 0
    v_mov_b32 v5, 0
    v_mov_b32 v6, 0
    v_mov_b32 v7, 0
    """)
    for j in range(4):
        a(f"ds_write_b128 v3, v[4:7] offset:{j*8192}")
    a("v_lshlrev_b32 v8, 2, v0")
    a("ds_write_b32 v8, v4 offset:32768")
    a(f"s_mul_i32 s4, s2, {CH*4}")
    a("s_waitcnt lgkmcnt(0)")
    stamp(a, 2, 0)
    a("s_add_u32 s32, s12, s4\ns_addc_u32 s33, s13, 0")
    a(f"s_mov_b32 s34, {CH*4}\ns_mov_b32 s35, 0x00020000")
    a("s_add_u32 s36, s14, s4\ns_addc_u32 s37, s15, 0")
    a(f"s_mov_b32 s38, {CH*4}\ns_mov_b32 s39, 0x00020000")
    a("s_mov_b32 s5, 8192")
    D, S, RK, CA = 12, 20, 28, 36
    a(f"buffer_load_dwordx4 {vr(D,4)}, v3, s[36:39], 0 offen")
    a(f"buffer_load_dwordx4 {vr(D+4,4)}, v3, s[36:39], s5 offen")
    a(f"buffer_load_dwordx4 {vr(S,4)}, v3, s[32:35], 0 offen")
    a(f"buffer_load_dwordx4 {vr(S+4,4)}, v3, s[32:35], s5 offen")
    EPF = 2 if 'epf' in OPT else 0
    if EPF:
        a(f"s_mul_i32 s4, s2, {CH*32}")
        a("s_add_u32 s60, s10, s4\ns_addc_u32 s61, s11, 0")
        a(f"s_mov_b32 s62, {CH*32}\ns_mov_b32 s63, 0x00020000")
        a("v_lshlrev_b32 v47, 7, v0")
        a("v_add_u32 v48, 0x10000, v47")
        nt = " nt" if 'epfnt' in OPT else ""
        a(f"buffer_load_dword v49, v47, s[60:63], 0 offen{nt}")
        a(f"buffer_load_dword v50, v48, s[60:63], 0 offen{nt}")
    srd(a, 40, 30, 31, NRANGE*NCHUNK*128, add=WS_CELLS)
    srd(a, 44, 30, 31, WS_WF - WS_OVFC, add=WS_OVFC)
    a(f"""
    v_cmp_gt_u32 vcc, {CH//4 - 512}, v0
    s_mov_b64 s[48:49], vcc
    v_mov_b32 v9, 1
    v_mov_b32 v10, 21400
    v_mov_b32 v11, {65536-BLK}
    v_add_u32 v8, 1, v8           ; 4t+1
    s_mov_b32 s50, -49
    s_barrier
    """)
    stamp(a, 3, 0)
    a(f"s_waitcnt vmcnt({2+EPF})")
    stamp(a, 4, 0)
    for j in range(8):
        if j == 4: a("s_mov_b64 exec, s[48:49]")
        a(f"v_mul_u32_u24 v{CA+j}, v{D+j}, v10")
        a(f"v_lshrrev_b32 v{CA+j}, 20, v{CA+j}      ; range")
        a(f"v_lshlrev_b32 v44, 2, v{CA+j}")
        a(f"ds_add_rtn_u32 v{RK+j}, v44, v9 offset:32768")
    a("s_mov_b64 exec, -1")
    a(f"s_waitcnt vmcnt({EPF})")
    for j in range(8):
        a(f"v_mad_i32_i24 v{D+j}, v{CA+j}, s50, v{D+j}   ; loc")
        a(f"v_lshrrev_b32 v44, 2, v{D+j}")
        a(f"v_lshl_or_b32 v{D+j}, v{D+j}, 6, v44      ; (..g)<<6 | slot  (upper bits shift out)")
        a(f"v_mul_u32_u24 v44, v{S+j}, v10")
        a(f"v_lshrrev_b32 v44, 26, v44")
        a(f"v_mad_u32_u24 v{S+j}, v44, v11, v{S+j}")
        a(f"v_add_u32 v44, {(j%4) + (j//4)*2048}, v8")
        a(f"v_lshl_or_b32 v{S+j}, v{S+j}, 12, v44")
        a(f"v_lshl_or_b32 v{S+j}, v{D+j}, 24, v{S+j}   ; rec")
    a("s_waitcnt lgkmcnt(0)")
    stamp(a, 5, 0)
    a("s_mov_b64 s[52:53], 0")
    for j in range(8):
        if j < 4: a("s_mov_b64 exec, -1")
        else: a("s_mov_b64 exec, s[48:49]")
        a(f"v_lshl_add_u32 v44, v{CA+j}, 2, v{RK+j}")
        a(f"v_and_b32 v44, 31, v44")
        a(f"v_lshl_or_b32 v44, v{CA+j}, 5, v44")
        a(f"v_lshlrev_b32 v44, 2, v44")
        a(f"v_cmp_lt_u32 vcc, 31, v{RK+j}")
        a(f"s_or_b64 s[52:53], s[52:53], vcc")
        a(f"s_andn2_b64 exec, exec, vcc")
        a(f"ds_write_b32 v44, v{S+j}")
    a("s_mov_b64 exec, -1")
    a("s_cmp_eq_u64 s[52:53], 0")
    a("s_cbranch_scc1 P_noovf")
    a(f"s_mul_i32 s54, s2, {CH*4}")
    a(f"s_add_u32 s54, s54, {WS_OVFR - WS_OVFC:#x}")
    a(f"s_add_u32 s55, s54, {WS_OVFG - WS_OVFR:#x}")
    a("v_mov_b32 v45, 1024")
    a("v_mov_b32 v46, 0")
    for j in range(8):
        if j < 4: a("s_mov_b64 exec, -1")
        else: a("s_mov_b64 exec, s[48:49]")
        a(f"v_cmp_lt_u32 vcc, 31, v{RK+j}")
        a("s_and_b64 exec, exec, vcc")
        a(f"s_cbranch_execz P_ov{j}")
        a("ds_add_rtn_u32 v46, v45, v9 offset:32768")
        a("s_waitcnt lgkmcnt(0)")
        a("v_lshlrev_b32 v46, 2, v46")
        a(f"buffer_store_dword v{S+j}, v46, s[44:47], s54 offen")
        a(f"buffer_store_dword v{CA+j}, v46, s[44:47], s55 offen")
        a.label(f"P_ov{j}")
    a("s_mov_b64 exec, -1")
    a.label("P_noovf")
    a(f"""
    v_lshrrev_b32 v44, 3, v0
    v_mul_u32_u24 v44, {NCHUNK*128}, v44
    v_and_b32 v45, 7, v0
    v_lshl_add_u32 v44, v45, 4, v44
    s_lshl_b32 s54, s2, 7
    s_add_u32 s55, s54, {64*NCHUNK*128}
    s_add_u32 s56, s55, {64*NCHUNK*128}
    s_add_u32 s57, s56, {64*NCHUNK*128}
    v_mov_b32 v45, 1024
    s_waitcnt lgkmcnt(0)
    """)
    stamp(a, 6, 0)
    a("s_barrier")
    stamp(a, 7, 0)
    for j in range(4):
        a(f"ds_read_b128 {vr(12+4*j,4)}, v3 offset:{j*8192}")
    a("ds_read_b32 v46, v45 offset:32768")
    for j in range(4):
        a(f"s_waitcnt lgkmcnt({4-j})")
        a(f"buffer_store_dwordx4 {vr(12+4*j,4)}, v44, s[40:43], s{54+j} offen")
    stamp(a, 8, 0)
    if 'ts' in OPT:
        a("s_waitcnt vmcnt(0)")
        stamp_flush(a, 0)
        a("s_mov_b64 exec, -1")
    a("""
    s_lshl_b32 s54, s2, 2
    v_mov_b32 v45, 0
    v_cmp_eq_u32 vcc, 0, v0
    s_and_b64 exec, exec, vcc
    s_cbranch_execz P_end
    s_waitcnt lgkmcnt(0)
    buffer_store_dword v46, v45, s[44:47], s54 offen
    """)
    a.label("P_end")
    a("s_endpgm")

CAP   = 640
L_CNT, L_BAS, L_FLG, L_Z = 0, 1024, 2048, 2560
L_RL  = 4096
L_EO  = L_RL + 16*CAP
L_M   = L_EO + 16*CAP
L_E   = L_M + 64*CAP
L_X   = L_E + 32768
L_U   = L_X + 16384
L_A   = L_U + 16384
L_TOT = L_A + 16384
assert L_E % 8192 == 0
PADROW = 3*BOFF + BLK*512 + 128
PADE = 0x3FF000

ACC, G, BV, SEL, S_, P_, R_ = 0, 32, 64, 128, 144, 152, 160
WC, AOP, EE, OH = 176, 184, 192, 196
vE, vOH, vS, vSt, vR, vEOa, vEOk, vT, vT2, vTID, vCB, vTS = 200, 201, 202, 203, 204, 205, 206, 207, 208, 209, 210, 211
vIt, vIt0, vFl, vFa = 212, 213, 214, 215
WF = 216
vFo, vEm, vXa, vXt, vAd, vPf = 248, 249, 250, 251, 252, 253
NPF = int(next((o[3:] for o in OPT if o.startswith('pf=')), 0))

def sched(name, default):
    v = next((o.split('=')[1] for o in OPT if o.startswith(name + '=')), default)
    return {int(x.split(':')[0]): int(x.split(':')[1]) for x in v.split(',')}
SCH_L = sched('sl', '1:1,3:1,5:1,7:1,9:1,11:1,13:1,15:1')
SCH_D = sched('sd', '0:1,2:1,4:1,6:1,8:1,10:1,12:1,14:1')

def mfma(a, d, x, y, c):
    a(f"v_mfma_f32_32x32x16_bf16 {vr(d,16)}, {vr(x,4)}, {vr(y,4)}, {c if isinstance(c,str) else vr(c,16)}")

def edge_kernel(a):
    K = "edge_kernel"
    a.raw(f".globl {K}\n.p2align 8\n.type {K},@function")
    a.label(K)
    a(f"s_cmp_ge_u32 s2, {NRANGE}")
    a("s_cbranch_scc1 E_end")
    TSREG[0] = vTS
    stamp_rt(a, 0, 1); stamp(a, 1, 1)
    load_kernargs(a)
    REC, RK, RA, RV, EV, SL = 64, 72, 80, 88, 96, 104
    T0 = 112
    a(f"""
    v_mov_b32 v{vTID}, v0
    v_lshrrev_b32 v1, 6, v0
    v_lshrrev_b32 v{vCB}, 3, v0
    v_readfirstlane_b32 s3, v1
    v_lshlrev_b32 v{vCB}, 12, v{vCB}   ; chunk bits of first quad
    s_mov_b32 s6, 0
    s_mov_b32 s7, -1
    s_mov_b32 s71, {64<<12}
    s_mov_b32 s99, 0
    s_lshr_b32 s4, s3, 1
    s_and_b32 s5, s3, 1           ; fp
    """)
    a.label("E_round")
    t = T0
    a(f"""
    v_lshlrev_b32 v{t}, 4, v{vTID}
    v_mov_b32 v{t+4}, 0
    v_mov_b32 v{t+5}, 0
    v_mov_b32 v{t+6}, 0
    v_mov_b32 v{t+7}, 0
    v_mov_b32 v{t+8}, {PADROW:#x}
    v_mov_b32 v{t+9}, {PADROW:#x}
    v_mov_b32 v{t+10}, {PADROW:#x}
    v_mov_b32 v{t+11}, {PADROW:#x}
    v_mov_b32 v{t+12}, {PADE:#x}
    v_mov_b32 v{t+13}, {PADE:#x}
    v_mov_b32 v{t+14}, {PADE:#x}
    v_mov_b32 v{t+15}, {PADE:#x}
    v_add_u32 v{t+2}, 8192, v{t}
    """)
    a(f"""
    s_cmp_lg_u32 s6, 0
    s_cbranch_scc1 E_r0
    s_mul_i32 s33, s2, {NCHUNK*128}
    s_add_u32 s33, s33, {WS_CELLS:#x}
    s_mov_b32 s38, {NCHUNK*128}
    s_mov_b32 s39, 0x00020000
    s_waitcnt lgkmcnt(0)
    """)
    if 'ts2' in OPT: stamp(a, 8, 1)
    a("s_add_u32 s36, s30, s33\ns_addc_u32 s37, s31, 0")
    a(f"buffer_load_dwordx4 {vr(REC,4)}, v{t}, s[36:39], 0 offen")
    a(f"buffer_load_dwordx4 {vr(REC+4,4)}, v{t+2}, s[36:39], 0 offen")
    srd(a, 44, 8, 9, N*256)
    srd(a, 76, 30, 31, BLK*512, add=WS_BV)
    a("s_lshl_b32 s33, s3, 13")
    a(f"s_add_u32 s33, s33, {WS_WF:#x}")
    a("s_add_u32 s48, s30, s33\ns_addc_u32 s49, s31, 0\ns_mov_b32 s50, 0x2000\ns_mov_b32 s51, 0x00020000")
    a("s_lshl_b32 s33, s5, 11")
    a(f"s_add_u32 s33, s33, {WS_WC:#x}")
    a("s_add_u32 s72, s30, s33\ns_addc_u32 s73, s31, 0\ns_mov_b32 s74, 0x800\ns_mov_b32 s75, 0x00020000")
    a("s_lshl_b32 s33, s5, 8")
    a(f"s_add_u32 s33, s33, {WS_BV-128}")
    a(f"s_add_u32 s52, s30, s33\ns_addc_u32 s53, s31, 0\ns_mov_b32 s54, {BVSPAN:#x}")
    a("s_or_b32 s53, s53, 0x00040000\ns_mov_b32 s55, 0x00800000")
    srd(a, 56, 10, 11, E*32)
    srd(a, 60, 26, 27, N*256)
    srd(a, 64, 30, 31, WS_END - WS_OVFR, add=WS_OVFR)
    srd(a, 40, 30, 31, NCHUNK*4, add=WS_OVFC)
    a.label("E_r0")
    u = G
    w = R_
    def wload(ks): a(f"buffer_load_dwordx4 {vr(WF+4*ks,4)}, v{w+5 if ks<4 else w+6}, s[48:51], 0 offen offset:{(ks%4)*1024}")
    a(f"""
    v_and_b32 v{u}, 63, v{vTID}       ; lane
    s_mul_i32 s32, s2, {RN}
    s_lshl_b32 s33, s3, 3
    s_add_u32 s33, s33, s32
    v_lshrrev_b32 v{w}, 4, v{u}
    v_and_b32 v{w+1}, 15, v{u}
    v_add_u32 v{w+2}, s33, v{w}
    v_lshlrev_b32 v{w+2}, 8, v{w+2}
    s_lshl_b32 s33, s3, 1
    v_xor_b32 v{w+3}, s33, v{w+1}
    v_xor_b32 v{w+4}, 1, v{w+3}
    v_lshl_add_u32 v{w+3}, v{w+3}, 4, v{w+2}
    v_lshl_add_u32 v{w+4}, v{w+4}, 4, v{w+2}
    s_lshl_b32 s33, s3, 11
    s_add_u32 s33, s33, {L_X}
    s_mov_b32 m0, s33
    v_lshlrev_b32 v{w+5}, 4, v{u}
    v_add_u32 v{w+6}, 4096, v{w+5}
    """)
    if NPF:
        a(f"""
        s_lshr_b32 s33, s2, 3
        s_mul_i32 s33, s33, {BLK*512//32}
        v_lshlrev_b32 v{w+7}, 7, v{vTID}
        v_add_u32 v{w+7}, s33, v{w+7}
        v_cmp_gt_u32 vcc, {BLK*4//32}, v{vTID}
        s_nop 1
        v_cndmask_b32 v{w+7}, -1, v{w+7}, vcc
        """)
    mark = len(a.l)
    for j in range(5):
        a(f"ds_write_b128 v{t}, {vr(t+4,4)} offset:{L_M + j*8192}")
    a(f"""
    ds_write_b128 v{t}, {vr(t+8,4)} offset:{L_RL}
    ds_write_b128 v{t}, {vr(t+12,4)} offset:{L_EO}
    s_cmp_ge_u32 s3, 4
    s_cbranch_scc1 E_i1
    ds_write_b128 v{t}, {vr(t+4,4)}
    s_cmp_ge_u32 s3, 2
    s_cbranch_scc1 E_i1
    ds_write_b128 v{t}, {vr(t+8,4)} offset:{L_RL+8192}
    ds_write_b128 v{t}, {vr(t+12,4)} offset:{L_EO+8192}
    """)
    a.label("E_i1")
    a(f"""
    v_lshrrev_b32 v{u+1}, 5, v{u}     ; h
    v_and_b32 v{u+2}, 31, v{u}        ; m
    v_and_b32 v{u+3}, 1, v{u}
    v_xor_b32 v{u+3}, v{u+3}, v{u+1}
    v_lshlrev_b32 v{u+3}, 4, v{u+3}
    v_add_u32 v{vEOk}, -32, v{u+3}
    v_lshrrev_b32 v{u+3}, 1, v{u+2}
    v_lshlrev_b32 v{u+3}, 5, v{u+3}
    v_lshl_add_u32 v{u+3}, v{u+1}, 4, v{u+3}
    v_add_u32 v{vOH}, {L_M}, v{u+3}     ; M + (m>>1)*32 + 16h
    v_bfe_u32 v{u+3}, v{u}, 3, 1      ; r'>>1
    v_lshl_add_u32 v{u+3}, v{u+1}, 1, v{u+3}
    v_lshlrev_b32 v{u+3}, 5, v{u+3}
    v_and_b32 v{u+4}, 3, v{u}
    v_lshl_add_u32 v{u+3}, v{u+4}, 3, v{u+3}
    v_add_u32 v{u+3}, {L_M}, v{u+3}
    v_xor_b32 v{u+4}, 1, v{u+1}
    v_lshlrev_b32 v{u+4}, 6, v{u+4}
    v_add_u32 v{u+4}, {L_Z}, v{u+4}
    v_lshrrev_b32 v{u+5}, 2, v{u}
    v_xor_b32 v{u+5}, v{u+5}, v{w}
    v_and_b32 v{u+5}, 1, v{u+5}       ; 1: real
    v_lshlrev_b32 v{vSt}, 10, v{u+5}
    v_cmp_eq_u32 vcc, 1, v{u+5}
    v_lshlrev_b32 v{u+6}, 4, v{u+1}
    v_add_u32 v{vR}, {L_RL}, v{u+6}      ; RL + 16h
    v_cndmask_b32 v{vS}, v{u+4}, v{u+3}, vcc
    s_lshl_b32 s34, s5, 7
    s_add_u32 s33, s34, {L_EO}
    v_lshrrev_b32 v{u+3}, 1, v{u}
    v_lshlrev_b32 v{u+3}, 2, v{u+3}
    v_add_u32 v{vEOa}, s33, v{u+3}
    s_lshr_b32 s70, s3, 1
    s_lshl_b32 s33, s70, 3
    s_lshl_b32 s70, s70, 13
    s_add_u32 s70, s70, {L_E}
    v_lshrrev_b32 v{u+3}, 4, v{u+2}
    v_xor_b32 v{u+3}, v{u+3}, v{u+1}
    v_lshl_add_u32 v{u+3}, v{u+2}, 1, v{u+3}
    v_lshlrev_b32 v{u+3}, 4, v{u+3}
    v_add_u32 v{vE}, s70, v{u+3}
    s_add_u32 s33, s33, {L_FLG}
    v_mov_b32 v{vFa}, s33
    s_lshl_b32 s34, s5, 2
    s_add_u32 s33, s33, s34
    v_mov_b32 v{vFo}, s33
    v_mov_b32 v{vIt}, 1
    v_mov_b32 v{vIt0}, 0
    v_mov_b32 v{vEm}, 0x1fff
    v_mov_b32 v{u+8}, 16
    v_mov_b32 v{u+9}, 0x3f80
    v_mov_b32 v{u+10}, 0x80
    v_mov_b32 v{u+11}, 0xfff
    v_mul_u32_u24 v{u+13}, {CAP*16}, v{w}   ; group base (x16 units)
    v_add_u32 v{u+14}, s71, v{vCB}        ; chunk bits second quad
    v_mov_b32 v{u+15}, {L_FLG+32}
    """)
    a(f"""
    v_bfe_u32 v{w+8}, v{u}, 2, 1
    v_xor_b32 v{w+8}, v{w+8}, v{u+1}
    v_bfe_u32 v{w+9}, v{u}, 3, 2
    v_and_b32 v{w+10}, 3, v{u}
    v_lshl_or_b32 v{w+10}, v{w+9}, 2, v{w+10}
    v_lshl_or_b32 v{w+10}, v{w+8}, 4, v{w+10}
    """)
    for k in range(0, 16, 4):
        for i in range(4): a(f"v_cmp_eq_u32 s[{80+2*i}:{81+2*i}], {k+i}, v{w+10}")
        for i in range(4): a(f"v_cndmask_b32 v{SEL+k+i}, 0, v{u+9}, s[{80+2*i}:{81+2*i}]")
    a(f"""
    v_bfe_u32 v{w+8}, v{u}, 4, 1        ; rho>>4
    v_and_b32 v{w+9}, 3, v{w+1}
    v_bfe_u32 v{w+10}, v{w+1}, 2, 1
    v_bfe_u32 v{w+11}, v{w+1}, 3, 1
    v_lshl_or_b32 v{w+9}, v{w+10}, 3, v{w+9}
    v_lshl_or_b32 v{w+9}, v{w+11}, 2, v{w+9}   ; swapped
    s_cmp_lt_u32 s3, 4
    s_cselect_b64 s[68:69], -1, 0
    v_cndmask_b32 v{w+9}, v{w+1}, v{w+9}, s[68:69]   ; slot
    v_lshl_add_u32 v{w+8}, v{w+9}, 2, v{w+8}
    v_xor_b32 v{w+9}, v{w+9}, v{u+1}
    v_lshlrev_b32 v{w+9}, 4, v{w+9}
    v_lshl_or_b32 v{w+9}, v{w+8}, 8, v{w+9}
    v_add_u32 v{vXa}, {L_X}, v{w+9}
    s_and_b32 s35, s3, 3
    s_lshl_b32 s35, s35, 10
    s_mov_b32 s32, {L_U}
    s_cmp_lt_u32 s3, 4
    s_cselect_b32 s32, {L_A}, s32
    s_add_u32 s32, s32, s35
    v_add_u32 v{vAd}, s32, v{w+5}
    s_add_u32 s33, s2, 7
    s_and_b32 s33, s33, 7
    s_lshl_b32 s68, 0x01010101, s33
    """)
    lds_ = [f"buffer_load_dwordx4 v{w+3}, s[44:47], 0 offen lds", f"buffer_load_dwordx4 v{w+4}, s[44:47], 0 offen offset:1024 lds"]
    lds_ += [f"buffer_load_dwordx4 {vr(WF+4*ks,4)}, v{w+5 if ks<4 else w+6}, s[48:51], 0 offen offset:{(ks%4)*1024}" for ks in range(8)]
    lds_ += [f"buffer_load_dwordx4 {vr(WC,4)}, v{w+5}, s[72:75], 0 offen", f"buffer_load_dwordx4 {vr(WC+4,4)}, v{w+5}, s[72:75], 0 offen offset:1024"]
    sec = a.l[mark:]
    after = next(i for i, x in enumerate(sec) if x.startswith("E_i1:")) + 1
    out = ["    " + lds_.pop(0), "    " + lds_.pop(0)] + sec[:after]
    rest_ = sec[after:]
    step = len(rest_) // len(lds_)
    for i, x in enumerate(rest_):
        if i % step == 0 and lds_: out.append("    " + lds_.pop(0))
        out.append(x)
    assert not lds_
    a.l[mark:] = out
    if NPF: a(f"buffer_load_dword v{vPf}, v{w+7}, s[76:79], 0 offen")
    a("s_waitcnt lgkmcnt(0)")
    a("s_barrier")
    stamp(a, 2, 1)
    a(f"s_waitcnt vmcnt({12+NPF})")
    stamp(a, 3, 1)
    def em(j): return f"s[{80+2*j}:{81+2*j}]"
    for j in range(8):
        a(f"v_cmp_ne_u32 {em(j)}, 0, v{REC+j}")
        a(f"v_lshrrev_b32 v{RA+j}, 22, v{REC+j}")
        a(f"v_and_b32 v{RA+j}, 0x3fc, v{RA+j}")
    for j in range(8):
        a(f"s_mov_b64 exec, {em(j)}")
        a(f"ds_add_rtn_u32 v{RK+j}, v{RA+j}, v{u+8}")
    a(f"""
    s_or_b64 s[32:33], {em(3)}, {em(7)}
    s_mov_b32 s69, s68
    s_and_b64 exec, s[32:33], s[68:69]
    ds_write_b32 v{u+15}, v{u+8}
    s_mov_b64 exec, -1
    """)
    for j in range(8):
        a(f"v_lshrrev_b32 v{SL+j}, 23, v{REC+j}")
        a(f"v_lshrrev_b32 v{RV+j}, 3, v{REC+j}")
        a(f"v_and_or_b32 v{EV+j}, v{REC+j}, v{u+11}, v{vCB if j<4 else u+14}")
        a(f"v_and_b32 v{SL+j}, 0x1e, v{SL+j}")
        a(f"v_and_b32 v{RV+j}, 0x061ffe00, v{RV+j}")
    a("s_waitcnt lgkmcnt(0)")
    if 'ts2' in OPT: stamp(a, 10, 1)
    a("s_barrier")
    if 'ts2' in OPT: stamp(a, 9, 1)
    c = u + 16
    a(f"""
    ds_read_b128 v[{c}:{c+3}], v{w+5}
    ds_read_b32 v{c+10}, v{u+15}
    s_waitcnt lgkmcnt(1)
    v_add_u32 v{c}, 16, v{c}
    v_add_u32 v{c+1}, 16, v{c+1}
    v_add_u32 v{c+2}, 16, v{c+2}
    v_add_u32 v{c+3}, 16, v{c+3}
    v_and_b32 v{c}, -32, v{c}
    v_and_b32 v{c+1}, -32, v{c+1}
    v_and_b32 v{c+2}, -32, v{c+2}
    v_and_b32 v{c+3}, -32, v{c+3}
    v_add_u32 v{c+8}, v{c}, v{c+1}
    v_add3_u32 v{c+9}, v{c+8}, v{c+2}, v{c+3}
    v_sub_u32 v{c+4}, v{u+13}, v{c+9}
    s_nop 0
    v_add_u32_dpp v{c+9}, v{c+9}, v{c+9} row_shr:1 row_mask:0xf bank_mask:0xf
    s_nop 1
    v_add_u32_dpp v{c+9}, v{c+9}, v{c+9} row_shr:2 row_mask:0xf bank_mask:0xf
    s_nop 1
    v_add_u32_dpp v{c+9}, v{c+9}, v{c+9} row_shr:4 row_mask:0xf bank_mask:0xf
    s_nop 1
    v_add_u32_dpp v{c+9}, v{c+9}, v{c+9} row_shr:8 row_mask:0xf bank_mask:0xf
    v_add_u32 v{c+4}, v{c+4}, v{c+9}
    v_add_u32 v{c+5}, v{c+4}, v{c}
    v_add_u32 v{c+6}, v{c+4}, v{c+8}
    v_add_u32 v{c+7}, v{c+6}, v{c+2}
    ds_write_b128 v{w+5}, v[{c+4}:{c+7}] offset:{L_BAS}
    """)
    for j in range(8):
        a(f"ds_read_b32 v{RA+j}, v{RA+j} offset:{L_BAS}")
    a(f"""
    v_readlane_b32 s32, v{c+9}, 15
    v_readlane_b32 s33, v{c+9}, 31
    v_readlane_b32 s34, v{c+9}, 47
    v_readlane_b32 s35, v{c+9}, 63
    s_waitcnt lgkmcnt(9)
    v_readfirstlane_b32 s96, v{c+10}
    s_max_u32 s97, s32, s33
    s_max_u32 s98, s34, s35
    s_max_u32 s97, s97, s98       ; max n16
    s_cmp_lg_u32 s6, 0
    s_cbranch_scc1 E_noasg
    s_mov_b32 s99, s96            ; overflow lists may hold records of this range
    s_add_u32 s32, s32, 511
    s_add_u32 s33, s33, 511
    s_add_u32 s34, s34, 511
    s_add_u32 s35, s35, 511
    s_lshr_b32 s32, s32, 9
    s_lshr_b32 s33, s33, 9
    s_lshr_b32 s34, s34, 9
    s_lshr_b32 s35, s35, 9
    s_add_u32 s96, s32, s34
    s_add_u32 s98, s33, s35
    s_absdiff_i32 s68, s96, s98   ; (0,2)(1,3)
    s_mov_b32 s4, {0 | 1<<2 | 2<<4 | 3<<6}
    s_add_u32 s96, s32, s33
    s_add_u32 s98, s34, s35
    s_absdiff_i32 s69, s96, s98   ; (0,1)(2,3)
    s_cmp_lt_u32 s69, s68
    s_cselect_b32 s4, {0 | 2<<2 | 1<<4 | 3<<6}, s4
    s_min_u32 s68, s68, s69
    s_add_u32 s96, s32, s35
    s_add_u32 s98, s33, s34
    s_absdiff_i32 s69, s96, s98   ; (0,3)(1,2)
    s_cmp_lt_u32 s69, s68
    s_cselect_b32 s4, {0 | 1<<2 | 3<<4 | 2<<6}, s4
    s_and_b32 s32, s3, 6
    s_lshr_b32 s4, s4, s32
    s_and_b32 s4, s4, 3
    """)
    if 'nobal' in OPT: a("s_lshr_b32 s4, s3, 1")
    a.label("E_noasg")
    a(f"""
    s_lshl_b32 s32, s4, 4
    s_add_u32 s32, s32, 15
    s_mul_i32 s33, s4, {CAP*4}
    s_mul_i32 s34, s4, {CAP*16//1024}
    v_readlane_b32 s96, v{c+9}, s32      ; own n16
    s_mov_b32 s98, 0
    v_add_u32 v{vR}, s33, v{vR}
    v_add_u32 v{vEOa}, s33, v{vEOa}
    s_lshl_b32 s33, s33, 2
    v_add_u32 v{vOH}, s33, v{vOH}
    v_mad_u32_u24 v{vS}, v{vSt}, s34, v{vS}
    s_waitcnt lgkmcnt(0)
    """)
    for j in range(8):
        a(f"v_add_u32 v{RK+j}, v{RK+j}, v{RA+j}       ; gp16")
    if 'ts2' in OPT: stamp(a, 11, 1)
    a(f"s_cmp_gt_u32 s97, {CAP*16}")
    a("s_cbranch_scc0 E_nopend")
    a(f"s_mov_b32 s98, 1\ns_min_u32 s96, s96, {CAP*16}")
    for j in range(8):
        a(f"v_lshrrev_b32 v{c}, 30, v{REC+j}")
        a(f"v_add_u32 v{c}, 1, v{c}")
        a(f"v_mul_u32_u24 v{c}, {CAP*16}, v{c}        ; limit")
        a(f"v_cmp_lt_u32 vcc, v{RK+j}, v{c}")
        a(f"s_and_b64 {em(j)}, {em(j)}, vcc")
        a("s_nop 1")
        a(f"v_cndmask_b32 v{T0+j}, v{REC+j}, 0, {em(j)}")
    a(f"""
    s_lshl_b32 s33, s2, 14
    s_add_u32 s33, s33, {WS_PEND - WS_OVFR:#x}
    v_lshlrev_b32 v{c}, 5, v{vTID}
    v_add_u32 v{c}, s33, v{c}
    buffer_store_dwordx4 {vr(T0,4)}, v{c}, s[64:67], 0 offen
    buffer_store_dwordx4 {vr(T0+4,4)}, v{c}, s[64:67], 0 offen offset:16
    s_waitcnt vmcnt(0)
    """)
    a.label("E_nopend")
    for j in range(8):
        a(f"v_add_u32 v{RA+j}, v{RK+j}, v{RK+j}")
        a(f"v_bfi_b32 v{SL+j}, 31, v{SL+j}, v{RK+j}")
        a(f"v_lshrrev_b32 v{RK+j}, 2, v{RK+j}")
        a(f"v_bitop3_b32 v{RV+j}, v{RA+j}, v{u+10}, v{RV+j} bitop3:0xae   ; c | (~a & b)")
    for j in range(8):
        a(f"s_mov_b64 exec, {em(j)}")
        if 'nomem' in OPT: pass
        elif 'noe' in OPT: a(f"ds_write_b32 v{RK+j}, v{RV+j} offset:{L_RL}")
        elif 'nobv' in OPT: a(f"ds_write_b32 v{RK+j}, v{EV+j} offset:{L_EO}")
        else: a(f"ds_write2st64_b32 v{RK+j}, v{RV+j}, v{EV+j} offset0:{L_RL//256} offset1:{L_EO//256}")
        a(f"ds_write_b16 v{SL+j}, v{u+9} offset:{L_M}")
    a("s_mov_b64 exec, -1")
    a("""
    s_add_u32 s96, s96, 511
    s_lshr_b32 s96, s96, 9
    """)
    if 'ts2' in OPT: stamp(a, 13, 1)
    a(f"s_waitcnt vmcnt({10+NPF}) lgkmcnt(0)")
    a("s_barrier")
    stamp(a, 4, 1)
    Q = BV + 48
    a(f"ds_read_b32 v{vT}, v{vEOa}")
    a(f"ds_read_b32 v{OH}, v{vEOa} offset:256")
    for j in range(4):
        a(f"ds_read_b128 {vr(Q+4*j,4)}, v{vR} offset:{j*32}")
    for j in range(4):
        a(f"ds_read_b128 {vr(R_+4*j,4)}, v{vR} offset:{128+j*32}")
    a("s_mov_b32 s87, 102400")
    def eo_calc(src, tmp):
        return [f"v_lshrrev_b32 v{tmp}, 12, v{src}",
                f"v_and_b32 v{src}, 0xfff, v{src}",
                f"v_lshl_add_u32 v{src}, v{src}, 5, v{vEOk}",
                f"v_mad_u32_u24 v{src}, v{tmp}, s87, v{src}"]
    a("s_lshl_b32 s84, s5, 10")
    a("s_add_u32 s33, s70, s84")
    a("s_mov_b32 m0, s33")
    a("s_waitcnt lgkmcnt(8)")
    for x in eo_calc(vT, vT2): a(x)
    for x in eo_calc(OH, vT2): a(x)
    a(f"buffer_load_dwordx4 v{vT}, s[56:59], 0 offen lds")
    a(f"v_mov_b32 v{vT}, v{OH}")
    a("s_add_u32 s84, s84, 2048")
    a("s_add_u32 s33, s70, s84")
    a("s_mov_b32 m0, s33")
    bv0 = [f"buffer_load_dword v{BV+r}, v{Q+r}, s[52:55], 0 offen" for r in range(16)]
    bv1 = [f"buffer_load_dwordx4 v{vT}, s[56:59], 0 offen lds"] + [f"buffer_load_dword v{BV+16+r}, v{Q+r}, s[52:55], 0 offen offset:128" for r in range(16)]
    bv2 = [f"buffer_load_dword v{BV+32+r}, v{R_+r}, s[52:55], 0 offen" for r in range(16)]
    a("s_cmp_eq_u32 s6, 0")
    a("s_cbranch_scc1 E_gemm")
    a("s_waitcnt lgkmcnt(0)")
    for x in bv0: a(x)
    a("s_branch E_nogemm")
    a.label("E_gemm")
    def xread(ks):
        a(f"v_xor_b32 v{vXt}, {ks<<5}, v{vXa}")
        a(f"ds_read_b128 {vr(G+8*(ks%4),4)}, v{vXt}")
        a(f"ds_read_b128 {vr(G+8*(ks%4)+4,4)}, v{vXt} offset:512")
    for ks in range(4): xread(ks)
    a("s_cmp_lt_u32 s3, 4")
    a(f"s_cselect_b32 s34, {NEG_LOG2E:#x}, 1.0")
    a(f"s_waitcnt vmcnt({1+NPF}) lgkmcnt(0)")
    rest2 = list(bv0)
    GI = int(next((o[3:] for o in OPT if o.startswith('gi=')), 1))
    for ks in range(8):
        if ks >= 4: a(f"s_waitcnt lgkmcnt({2*(7-ks)})")
        mfma(a, ACC, G+8*(ks%4), WF+4*ks, "0" if ks == 0 else ACC)
        mfma(a, ACC+16, G+8*(ks%4)+4, WF+4*ks, "0" if ks == 0 else ACC+16)
        if ks < 4: xread(ks+4)
        for _ in range(GI if GI < 3 else (1 if ks < 2 else 0)): a(rest2.pop(0))
    a("s_nop 10")
    for r in range(32):
        a(f"v_mul_f32 v{ACC+r}, s34, v{ACC+r}")
    for r in range(16):
        a(f"v_cvt_pk_bf16_f32 v{G+r}, v{ACC+2*r}, v{ACC+2*r+1}")
    for j in range(4):
        a(f"ds_write_b128 v{vAd}, {vr(G+4*j,4)} offset:{j*4096}")
    for x in rest2: a(x)
    for r in range(32):
        a(f"v_mov_b32 v{ACC+r}, 0")
    a.label("E_nogemm")
    for r in range(16):
        a(f"v_mov_b32 v{S_+r}, 0          ; S and P")
    for r in range(0, 16, 2):
        a(f"v_mov_b32 v{G+16+r}, 0")
    a(f"v_and_b32 v{vT2}, 63, v{vTID}")
    a(f"v_lshlrev_b32 v{vT2}, 4, v{vT2}")
    a("s_lshl_b32 s33, s5, 11")
    a("s_lshl_b32 s34, s4, 12")
    a("s_add_u32 s33, s33, s34")
    a(f"s_add_u32 s33, s33, {L_A}")
    a(f"v_add_u32 v{vT2}, s33, v{vT2}")
    stamp(a, 5, 1)
    a("s_waitcnt vmcnt(16) lgkmcnt(0)")
    stamp(a, 6, 1)
    a("s_barrier")
    stamp(a, 7, 1)
    a(f"ds_read_b128 {vr(EE,4)}, v{vE}")
    a(f"ds_read_b128 {vr(OH,4)}, v{vOH}")
    a(f"ds_read_b128 {vr(AOP,4)}, v{vT2}")
    a(f"ds_read_b128 {vr(AOP+4,4)}, v{vT2} offset:1024")
    a(f"v_add_u32 v{vE}, 1024, v{vE}")
    a("s_mov_b32 s92, 0")
    a("s_cmp_eq_u32 s96, 0")
    a("s_cbranch_scc1 E_done")
    for x in bv1: a(x)
    a("s_waitcnt lgkmcnt(0)")
    mfma(a, G, EE, WC, "0")
    mfma(a, G, OH, AOP, G)
    a("s_waitcnt vmcnt(17)")
    for k in range(4):
        mfma(a, G, SEL+4*k, BV+4*k, G)
    if 'ts' in OPT and 'ts2' not in OPT: stamp(a, 9, 1)
    for x in bv2: a(x)
    if 'ts' in OPT and 'ts2' not in OPT: stamp(a, 8, 1)
    a("s_cmp_ge_u32 s3, 4")
    a("s_cbranch_scc1 E_entB")
    slow = []
    loop_start = len(a.l)
    for role in range(2):
        hiP = (2, 1)[role]
        X = "AB"[role]
        if role: a.label("E_entB")
        a(f"s_setprio {hiP}")
        a("s_nop 1")
        a.raw(".p2align 6")
        a.label(f"E_loop{X}")
        for n in range(4):
            f = n & 1
            gc, gn = G + 16*f, G + 16*(1-f)
            bc, bn, bl = BV + 16*n, BV + 16*((n+1)&3), BV + 16*((n+3)&3)
            tl = n >> 1
            ld = [f"buffer_load_dword v{bl+r}, v{R_+r}, s[52:55], 0 offen offset:{128*(1-f)}" for r in range(16)]
            eread = lambda tl_: f"ds_read_b128 {vr(EE,4)}, v{vE}"
            fread = lambda tl_: f"ds_read_b32 v{vFl}, v{vFa} offset:{4*(1-tl_)}"
            ds = []
            if f == 0:
                ds = [fread(tl), eread(tl), f"ds_read_b128 {vr(OH,4)}, v{vOH} offset:{(tl+1)*512}"]
                ds += [f"ds_read_b64_tr_b16 {vr(S_+2*k,2)}, v{vS} offset:{tl*512 + k*128}" for k in range(4)]
                ds += [f"ds_read_b128 {vr(R_+4*k,4)}, v{vR} offset:{(tl+2)*128 + k*32}" for k in range(4)]
                if n == 0: ds += [f"ds_read_b32 v{vT}, v{vEOa} offset:512"]
            dma = []
            if n == 2:
                dma = ["s_add_u32 s84, s84, 2048", "s_and_b32 s84, s84, 0x1fff", "s_add_u32 s33, s70, s84", "s_mov_b32 m0, s33", "s_nop 0",
                       f"buffer_load_dwordx4 v{vT}, s[56:59], 0 offen lds"]
            pub = [f"ds_write_b32 v{vFo}, v{vIt}"] if n == 0 else []
            def check(tl_):
                lab = f"E_sl{X}{tl_}"
                need = vIt if tl_ else vIt0
                a(f"v_cmp_gt_u32 vcc, v{need}, v{vFl}")
                a(f"s_cbranch_vccnz {lab}")
                a.label(f"{lab}r")
                slow.append((lab, fread(tl_), eread(tl_), need))
            mA = [(ACC+16*(1-f), S_, P_, ACC+16*(1-f)), (ACC+16*(1-f), S_+4, P_+4, ACC+16*(1-f)), (gn, EE, WC+4*(1-f), "0"), (gn, OH, AOP+4*(1-f), gn)]
            mB = [(gn, SEL+4*k, bn+4*k, gn) for k in range(4)]
            def trans(op, m):
                for r in range(16):
                    if r % 4 == 0: mfma(a, *m[r//4])
                    a(f"{op} v{gc+r}, v{gc+r}")
            adds = [f"v_add_f32 v{gc+r}, 1.0, v{gc+r}" for r in range(16)]
            simp = [f"v_add_f32 v{P_+j}, v{gc+2*j}, v{gc+2*j+1}" for j in range(8)]
            simp += [f"v_mul_f32 v{gc+2*j}, v{gc+2*j}, v{bc+2*j}" for j in range(8)]
            simp += [f"v_fmac_f32 v{gc+2*j}, v{gc+2*j+1}, v{bc+2*j+1}" for j in range(8)]
            cx = []
            if n == 1:
                adds += eo_calc(vT, vT2)[:2]; cx = eo_calc(vT, vT2)[2:]
            if n == 3:
                simp += [f"v_add_u32 v{vOH}, 1024, v{vOH}", f"v_add_u32 v{vS}, v{vSt}, v{vS}", f"v_add_u32 v{vR}, 256, v{vR}",
                         f"v_add_u32 v{vEOa}, 256, v{vEOa}", f"v_add_u32 v{vE}, 1024, v{vE}", f"v_add_u32 v{vIt}, 1, v{vIt}", f"v_add_u32 v{vIt0}, 1, v{vIt0}"]
            if n == 1:
                simp = [f"v_add_u32 v{vXt}, 1024, v{vE}"] + simp + [f"v_bitop3_b32 v{vE}, v{vEm}, v{vXt}, v{vE} bitop3:0xca   ; a ? b : c"]
            cvtp = [f"v_cvt_pk_bf16_f32 v{P_+j}, v{P_+j}, v{gn+2*j}" for j in range(8)]
            ctl = ["s_add_u32 s92, s92, 1", "s_cmp_lt_u32 s92, s96"] if f == 1 else []
            br = (["s_cbranch_scc0 E_fin"] if n == 1 else [f"s_cbranch_scc1 E_loop{X}"]) if f == 1 else []
            def emit(L):
                for x in L: a(x)
            def simple(ops):
                a("s_setprio 0"); emit(ops); a(f"s_setprio {hiP}")
            dm = 1 if n >= 2 else 0
            if role == 0:
                emit(cvtp); trans("v_exp_f32", mA)
                emit(dma + ld[:8])
                a(f"s_waitcnt vmcnt({24+dm})")
                emit(pub)
                simple(adds)
                emit(cx); trans("v_rcp_f32", mB)
                emit(ld[8:] + ds + ctl)
                if f == 0:
                    a("s_waitcnt lgkmcnt(0)")
                    check(tl)
                simple(simp)
                emit(br)
            else:
                if f == 1: a("s_waitcnt lgkmcnt(0)")
                emit(dma + ld[:8])
                if f == 1: check(tl)
                emit(cvtp); trans("v_exp_f32", mA)
                simple(adds)
                emit(ld[8:] + ds + ctl)
                a(f"s_waitcnt vmcnt({32+dm})")
                emit(pub)
                emit(cx); trans("v_rcp_f32", mB)
                simple(simp)
                emit(br)
        if role == 0: a("s_branch E_fin")
    body = a.l[loop_start:]
    def keep(x):
        if 'novalu' in OPT and any(k in x for k in ('v_exp', 'v_rcp', 'v_add_f32', 'v_mul_f32', 'v_fmac')): return False
        return True
    a.l[loop_start:] = [x for x in body if keep(x)]
    a.label("E_fin")
    for j in range(8): a(f"v_cvt_pk_bf16_f32 v{P_+j}, v{P_+j}, v{G+16+2*j}")
    mfma(a, ACC+16, S_, P_, ACC+16)
    a("s_setprio 0")
    mfma(a, ACC+16, S_+4, P_+4, ACC+16)
    a.label("E_done")
    stamp(a, 12, 1)
    a("s_or_b32 s33, s98, s99")
    a("s_cmp_eq_u32 s33, 0")
    a("s_cbranch_scc1 E_epi")
    a("s_waitcnt vmcnt(0) lgkmcnt(0)")
    a("s_cmp_lg_u32 s98, 0")
    a("s_cbranch_scc1 E_more_pend")
    a.label("E_nextchunk")
    a(f"""
    s_add_u32 s7, s7, 1
    s_cmp_ge_u32 s7, {NCHUNK}
    s_cbranch_scc1 E_epi
    s_lshl_b32 s33, s7, 2
    s_buffer_load_dword s34, s[40:43], s33
    s_waitcnt lgkmcnt(0)
    s_cmp_eq_u32 s34, 0
    s_cbranch_scc1 E_nextchunk
    s_mul_i32 s33, s7, {CH*4}
    v_lshlrev_b32 v{G}, 5, v{vTID}
    v_add_u32 v{G}, s33, v{G}
    v_add_u32 v{G+1}, {WS_OVFG - WS_OVFR:#x}, v{G}
    buffer_load_dwordx4 {vr(REC,4)}, v{G}, s[64:67], 0 offen
    buffer_load_dwordx4 {vr(REC+4,4)}, v{G}, s[64:67], 0 offen offset:16
    buffer_load_dwordx4 {vr(RK,4)}, v{G+1}, s[64:67], 0 offen
    buffer_load_dwordx4 {vr(RK+4,4)}, v{G+1}, s[64:67], 0 offen offset:16
    v_lshlrev_b32 v{G+2}, 3, v{vTID}
    s_lshl_b32 s33, s7, 12
    v_mov_b32 v{vCB}, s33
    s_mov_b32 s71, 0
    s_waitcnt vmcnt(0)
    """)
    for j in range(8):
        a(f"v_add_u32 v{G+3}, {j}, v{G+2}")
        a(f"v_cmp_gt_u32 vcc, s34, v{G+3}")
        a(f"v_cmp_eq_u32 s[68:69], s2, v{RK+j}")
        a("s_and_b64 vcc, vcc, s[68:69]")
        a("s_nop 1")
        a(f"v_cndmask_b32 v{REC+j}, 0, v{REC+j}, vcc")
    a("s_branch E_again")
    a.label("E_more_pend")
    a(f"""
    s_lshl_b32 s33, s2, 14
    s_add_u32 s33, s33, {WS_PEND - WS_OVFR:#x}
    v_lshlrev_b32 v{G}, 5, v{vTID}
    v_add_u32 v{G}, s33, v{G}
    buffer_load_dwordx4 {vr(REC,4)}, v{G}, s[64:67], 0 offen
    buffer_load_dwordx4 {vr(REC+4,4)}, v{G}, s[64:67], 0 offen offset:16
    """)
    a.label("E_again")
    a("""
    s_mov_b32 s6, 1
    s_waitcnt vmcnt(0) lgkmcnt(0)
    s_barrier
    s_branch E_round
    """)
    for lab, fr, er, need in slow:
        a.label(lab)
        a(fr)
        a(er)
        a("s_waitcnt lgkmcnt(0)")
        a(f"v_cmp_gt_u32 vcc, v{need}, v{vFl}")
        a(f"s_cbranch_vccnz {lab}")
        a(f"s_branch {lab}r")
    a.label("E_epi")
    e = R_
    a(f"""
    v_and_b32 v{e}, 63, v{vTID}
    v_lshrrev_b32 v{e+1}, 5, v{e}       ; h
    v_and_b32 v{e+2}, 31, v{e}          ; n
    s_lshl_b32 s33, s4, 12
    s_lshl_b32 s34, s5, 11
    s_add_u32 s33, s33, s34
    s_add_u32 s33, s33, {L_U}
    v_lshlrev_b32 v{e+3}, 4, v{e}
    v_add_u32 v{e+3}, s33, v{e+3}
    s_waitcnt lgkmcnt(0)
    ds_read_b128 {vr(EE,4)}, v{e+3}
    ds_read_b128 {vr(OH,4)}, v{e+3} offset:1024
    v_lshrrev_b32 v{e+3}, 3, v{e+2}
    s_lshl_b32 s33, s5, 3
    v_add_u32 v{e+3}, s33, v{e+3}       ; chunk (f=0)
    v_lshlrev_b32 v{e+4}, 2, v{e+1}     ; 4h
    v_xor_b32 v{e+3}, v{e+3}, v{e+4}
    v_lshlrev_b32 v{e+3}, 4, v{e+3}
    v_and_b32 v{e+5}, 7, v{e+2}
    v_lshl_add_u32 v{e+3}, v{e+5}, 1, v{e+3}
    v_lshl_add_u32 v{e+3}, v{e+4}, 10, v{e+3}
    s_lshl_b32 s33, s4, 8
    s_add_u32 s33, s33, {L_X}
    v_add_u32 v{e+3}, s33, v{e+3}
    """)
    for f in range(2):
        for r in range(8):
            s_ = (r//4)*8 + r%4
            a(f"v_xor_b32 v{e+5}, {(s_ ^ (4*f))<<4}, v{e+3}")
            a(f"ds_read_u16 v{G+8*f+r}, v{e+5} offset:{s_*1024}")
    a(f"""
    s_mul_i32 s33, s2, {RN}
    s_add_u32 s33, s33, s4
    s_lshl_b32 s33, s33, 8
    s_lshl_b32 s34, s5, 7
    s_add_u32 s33, s33, s34
    v_lshlrev_b32 v{e+6}, 12, v{e+1}
    v_lshl_add_u32 v{e+6}, v{e+2}, 1, v{e+6}
    v_add_u32 v{e+6}, s33, v{e+6}
    v_add_u32 v{e+7}, 8192, v{e+6}
    """)
    for f in range(2):
        for r in range(8):
            a(f"v_add_f32 v{ACC+16*f+8+r}, {EPS:#x}, v{ACC+16*f+8+r}")
    for f in range(2):
        for r in range(8):
            a(f"v_rcp_f32 v{ACC+16*f+8+r}, v{ACC+16*f+8+r}")
    a("s_waitcnt lgkmcnt(0)")
    for f in range(2):
        for r in range(8):
            uu = (EE if f == 0 else OH) + r//2
            if r % 2 == 0: a(f"v_lshlrev_b32 v{G+16+8*f+r}, 16, v{uu}")
            else: a(f"v_and_b32 v{G+16+8*f+r}, 0xffff0000, v{uu}")
            a(f"v_lshlrev_b32 v{G+8*f+r}, 16, v{G+8*f+r}")
    for f in range(2):
        for r in range(8):
            x = ACC+16*f+r
            a(f"v_fma_f32 v{x}, v{x}, v{x+8}, v{G+16+8*f+r}")
            a(f"v_max_f32 v{x}, 0, v{x}")
            a(f"v_add_f32 v{x}, v{x}, v{G+8*f+r}")
            a(f"v_cvt_pk_bf16_f32 v{x}, v{x}, v{x}")
    for r in range(8):
        if r == 4:
            a("s_cmp_eq_u32 s4, 0")
            a("s_cselect_b32 exec_hi, -1, 0")
        if r == 5:
            a("s_mov_b32 exec_hi, 0")
        for f in range(2):
            a(f"buffer_store_short v{ACC+16*f+r}, v{e+6 + r//4}, s[60:63], 0 offen offset:{(r%4)*1024 + 64*f}")
    stamp_flush(a, 1)
    a.label("E_end")
    a("s_endpgm")

def desc(a, name, vg, sg):
    a.raw(f""".amdhsa_kernel {name}
  .amdhsa_next_free_vgpr {vg}
  .amdhsa_next_free_sgpr {sg}
  .amdhsa_accum_offset {vg}
  .amdhsa_group_segment_fixed_size 0
  .amdhsa_kernarg_size 96
  .amdhsa_user_sgpr_count 2
  .amdhsa_user_sgpr_kernarg_segment_ptr 1
  .amdhsa_system_sgpr_workgroup_id_x 1
.end_amdhsa_kernel""")

def main(out):
    a = Asm()
    a.raw(f"; @launch kernel=prep_kernel grid=({NCHUNK+NGEMM+1},1,1) block=(512,1,1) lds=81920")
    a.raw(f"; @launch kernel=edge_kernel grid=({NRANGE},1,1) block=(512,1,1) lds={L_TOT}")
    a.raw('.amdgcn_target "amdgcn-amd-amdhsa--gfx950"')
    a.raw(".text")
    prep_kernel(a)
    edge_kernel(a)
    a.raw('.section .rodata,"a"')
    a.raw(".p2align 6")
    desc(a, "prep_kernel", 132 if "ts" in OPT else 128, 102 if "ts" in OPT else 96)
    a.raw(".p2align 6")
    desc(a, "edge_kernel", 256, 102)
    open(out, "w").write(a.text())

if __name__ == "__main__":
    main(sys.argv[1] if len(sys.argv) > 1 else f"cdna_kernels/{NAME}.s")
```

```python
import sys, struct

NAME = "standalone__edge_featured_mpnn_gatedgcn__graph"
N, E = 12500, 400000
NCHUNK, CH = 125, 3200
NRANGE, RN = 256, 49
BLK = 3136
NGEMM = 196
WS_BV    = 0x1000
BOFF     = 0x2000000
BVSPAN   = 3*BOFF + 0x400000
WS_MISC  = 0x800000
WS_CELLS = WS_MISC
WS_OVFC  = WS_CELLS + 0x400000
WS_OVFR  = WS_OVFC + 0x1000
WS_OVFG  = WS_OVFR + 0x200000
WS_WF    = WS_OVFG + 0x200000
WS_WC    = WS_WF + 0x10000
WS_PEND  = WS_WC + 0x1000
WS_END   = WS_PEND + 0x400000
NEG_LOG2E = struct.unpack('<I', struct.pack('<f', -1.4426950408889634))[0]
EPS = struct.unpack('<I', struct.pack('<f', 1e-6))[0]

OPT = set(sys.argv[2:])
TSREG = [124]
WS_TS = 0x9000000
def stamp(a, idx, kern):
    if 'ts' not in OPT: return
    a("s_memtime s[100:101]")
    a("s_waitcnt lgkmcnt(0)")
    a(f"v_writelane_b32 v{TSREG[0]}, s100, {idx}")
def stamp_rt(a, idx, kern):
    if 'ts' not in OPT: return
    a("s_memrealtime s[100:101]")
    a("s_waitcnt lgkmcnt(0)")
    a(f"v_writelane_b32 v{TSREG[0]}, s100, {idx}")
def stamp_flush(a, kern):
    if 'ts' not in OPT: return
    v = TSREG[0]
    a("s_mov_b64 exec, -1")
    stamp(a, 14, kern); stamp_rt(a, 15, kern)
    srd(a, 88, 30, 31, 0x1000000, add=WS_TS + kern*0x800000)
    a(f"s_lshl_b32 s100, s2, 4")
    a(f"s_add_u32 s100, s100, s3")
    a(f"s_lshl_b32 s100, s100, 6")
    a(f"v_mbcnt_lo_u32_b32 v1, -1, 0")
    a(f"v_lshlrev_b32 v1, 2, v1")
    a("s_mov_b64 exec, 0xffff")
    a(f"buffer_store_dword v{v}, v1, s[88:91], s100 offen")

class Asm:
    def __init__(self): self.l = []
    def __call__(self, s):
        for x in s.strip('\n').split('\n'):
            self.l.append(x if x.rstrip().endswith(':') and not x.startswith(' ') else '    ' + x.strip())
    def label(self, s): self.l.append(s + ':')
    def raw(self, s): self.l.append(s)
    def text(self): return '\n'.join(self.l) + '\n'

def vr(a, n): return f"v[{a}:{a+n-1}]"
def sr(a, n): return f"s[{a}:{a+n-1}]"

def srd(a, d, lo, hi, nbytes, w3=0x00020000, add=0, w1or=0):
    if add:
        a(f"s_add_u32 s{d}, s{lo}, {add:#x}")
        a(f"s_addc_u32 s{d+1}, s{hi}, 0")
    else:
        a(f"s_mov_b32 s{d}, s{lo}")
        a(f"s_mov_b32 s{d+1}, s{hi}")
    if w1or: a(f"s_or_b32 s{d+1}, s{d+1}, {w1or:#x}")
    a(f"s_mov_b32 s{d+2}, {nbytes:#x}")
    a(f"s_mov_b32 s{d+3}, {w3:#x}")

def load_kernargs(a):
    a("s_load_dwordx16 s[8:23], s[0:1], 0")
    a("s_load_dwordx8 s[24:31], s[0:1], 64")

def prep_kernel(a):
    K = "prep_kernel"
    a.raw(f".globl {K}\n.p2align 8\n.type {K},@function")
    a.label(K)
    a(f"s_cmp_ge_u32 s2, {NCHUNK+NGEMM+1}")
    a("s_cbranch_scc1 P_end")
    TSREG[0] = 128
    stamp_rt(a, 0, 0); stamp(a, 1, 0)
    load_kernargs(a)
    a("v_lshrrev_b32 v1, 6, v0")
    a("v_and_b32 v2, 63, v0          ; lane")
    a("v_readfirstlane_b32 s3, v1")
    a(f"s_cmp_lt_u32 s2, {NCHUNK}")
    a("s_cbranch_scc1 P_bin")
    a(f"s_sub_u32 s4, s2, {NCHUNK}     ; b")
    a("""
    v_lshrrev_b32 v3, 4, v2       ; row_in
    v_and_b32 v4, 15, v2          ; c
    v_lshlrev_b32 v5, 2, v3
    v_xor_b32 v5, v4, v5
    v_lshlrev_b32 v5, 4, v5
    v_lshl_or_b32 v5, v3, 8, v5
    """)
    a("""
    s_lshl_b32 s5, s3, 3          ; 8w
    v_add_u32 v6, s5, v3          ; row (j=0)
    v_and_b32 v7, 15, v6
    v_xor_b32 v7, v4, v7          ; chunk j=0
    v_xor_b32 v8, 4, v7
    s_lshl_b32 s6, s4, 6          ; b*64
    v_add_u32 v6, s6, v6
    v_lshlrev_b32 v6, 8, v6
    v_lshl_add_u32 v7, v7, 4, v6  ; voffset j=0
    v_lshl_add_u32 v8, v8, 4, v6
    s_waitcnt lgkmcnt(0)
    """)
    stamp(a, 2, 0)
    a(f"s_cmp_eq_u32 s4, {NGEMM}")
    a("s_cselect_b32 s32, s16, s18   ; w_a : w_b")
    a("s_cselect_b32 s33, s17, s19")
    a("s_cselect_b32 s36, s22, s24   ; w_u : w_v")
    a("s_cselect_b32 s37, s23, s25")
    a("s_mov_b32 s34, 0x8000\ns_mov_b32 s35, 0x00020000\ns_mov_b32 s38, 0x8000\ns_mov_b32 s39, 0x00020000")
    srd(a, 40, 8, 9, N*256)
    a("s_lshl_b32 s7, s3, 12         ; w*4096")
    a("s_lshl_b32 s44, s3, 11        ; w*2048")
    a("s_add_u32 s44, s44, 0x10000")
    a("s_mov_b32 m0, s44")
    a("s_nop 0")
    a("buffer_load_dwordx4 v7, s[40:43], 0 offen lds")
    a("buffer_load_dwordx4 v8, s[40:43], 0 offen offset:1024 lds")
    a("s_mov_b32 m0, s7")
    a("s_add_u32 s44, s7, 0x8000")
    for j in range(4):
        a(f"buffer_load_dwordx4 v5, s[32:35], s7 offen offset:{j*1024} lds")
    a("s_mov_b32 m0, s44")
    a("s_nop 0")
    for j in range(4):
        a(f"buffer_load_dwordx4 v5, s[36:39], s7 offen offset:{j*1024} lds")
    a("""
    s_and_b32 s45, s3, 3          ; ft
    s_lshr_b32 s46, s3, 2         ; mt
    v_lshrrev_b32 v9, 1, v3       ; h
    v_lshrrev_b32 v10, 2, v4      ; r
    v_and_b32 v11, 3, v4          ; c
    v_and_b32 v12, 1, v3          ; G&1
    v_lshlrev_b32 v12, 1, v12
    v_lshrrev_b32 v13, 1, v11
    v_add_u32 v12, v12, v13       ; 2(G&1)+(c>>1)
    s_lshl_b32 s47, s45, 2
    v_add_u32 v12, s47, v12       ; chunk16
    v_lshlrev_b32 v13, 2, v10
    v_xor_b32 v12, v12, v13       ; swizzled
    v_lshlrev_b32 v12, 4, v12
    v_and_b32 v13, 1, v11
    v_lshl_add_u32 v12, v13, 3, v12
    v_lshl_add_u32 v13, v9, 3, v10 ; 8h+r
    v_lshl_add_u32 v12, v13, 8, v12
    v_and_b32 v13, 31, v2         ; m / n
    s_lshl_b32 s47, s46, 5
    v_add_u32 v14, s47, v13       ; 32mt+m
    v_lshlrev_b32 v14, 8, v14
    v_xor_b32 v15, v9, v4         ; h ^ (m&15)
    v_lshl_or_b32 v14, v15, 4, v14
    v_add_u32 v14, 0x10000, v14   ; v14 = x base
    """)
    a(f"""
    s_mul_i32 s48, s4, 21400
    s_lshr_b32 s48, s48, 20       ; block = b/49
    s_mul_i32 s48, s48, {BOFF - BLK*512:#x}
    s_lshl_b32 s49, s4, 15        ; b*64*512
    s_add_u32 s48, s48, s49
    s_lshl_b32 s49, s46, 14       ; mt*32*512
    s_add_u32 s48, s48, s49
    s_lshl_b32 s49, s45, 7
    s_add_u32 s48, s48, s49
    v_lshlrev_b32 v15, 11, v9     ; 4h*512
    v_lshl_add_u32 v15, v13, 2, v15
    v_add_u32 v15, s48, v15
    """)
    srd(a, 52, 30, 31, BVSPAN, add=WS_BV)
    a("s_mov_b32 s56, 4096\ns_mov_b32 s57, 8192\ns_mov_b32 s58, 12288")
    a(f"s_mov_b32 s59, {NEG_LOG2E:#x}")
    a("s_mov_b32 s60, 0x07060100\ns_mov_b32 s61, 0x07060302")
    stamp(a, 3, 0)
    a("s_waitcnt vmcnt(0)")
    stamp(a, 4, 0)
    a("s_barrier")
    stamp(a, 5, 0)
    WB, WV, AB, AV, XA = 16, 48, 80, 96, 112
    def xread(ks):
        a(f"v_xor_b32 v11, {ks<<5}, v14")
        a(f"ds_read_b128 {vr(XA+4*(ks%4),4)}, v11")
    for ks in range(8):
        if ks < 4: xread(ks)
        for mat, base in ((0, WB), (1, WV)):
            for p in range(2):
                a(f"ds_read_b64_tr_b16 {vr(base+4*ks+2*p,2)}, v12 offset:{mat*32768+ks*4096+p*1024}")
    a(f"s_cmp_eq_u32 s4, {NGEMM}")
    a("s_cbranch_scc1 P_wfrag")
    a("s_waitcnt lgkmcnt(0)")
    for ks in range(8):
        cB = "0" if ks == 0 else vr(AB,16)
        cV = "0" if ks == 0 else vr(AV,16)
        if ks >= 4: a(f"s_waitcnt lgkmcnt({7-ks})")
        a(f"v_mfma_f32_32x32x16_bf16 {vr(AB,16)}, {vr(XA+4*(ks%4),4)}, {vr(WB+4*ks,4)}, {cB}")
        a(f"v_mfma_f32_32x32x16_bf16 {vr(AV,16)}, {vr(XA+4*(ks%4),4)}, {vr(WV+4*ks,4)}, {cV}")
        if ks < 4: xread(ks+4)
    a("s_nop 10")
    stamp(a, 6, 0)
    for r in range(16):
        a(f"v_mul_f32 v{AB+r}, s59, v{AB+r}")
    for r in range(16):
        a(f"v_add_f32 v{AV+r}, 0, v{AV+r}")
    for r in range(0, 16, 2):
        a(f"v_cvt_pk_bf16_f32 v{AB+r}, v{AB+r}, v{AB+r+1}")
    for r in range(16):
        a(f"v_add_u32 v{AV+r}, 0x8000, v{AV+r}")
    for r in range(16):
        w = "WORD_0" if r % 2 == 0 else "WORD_1"
        a(f"v_sub_u32_sdwa v{AV+r}, v{AV+r}, v{AB+(r&~1)} clamp dst_sel:DWORD dst_unused:UNUSED_PAD src0_sel:DWORD src1_sel:{w}")
    for r in range(16):
        a(f"v_perm_b32 v{AV+r}, v{AV+r}, v{AB+(r&~1)}, s{60 + (r&1)}")
    for r in range(16):
        so = "0" if r//4 == 0 else f"s{55 + r//4}"
        if r == 0: stamp(a, 7, 0)
        a(f"buffer_store_dword v{AV+r}, v15, s[52:55], {so} offen offset:{(r%4)*512}")
    stamp(a, 8, 0)
    if 'ts' in OPT: a("s_waitcnt vmcnt(0)")
    stamp_flush(a, 0)
    a("s_endpgm")
    a.label("P_wfrag")
    a(f"""
    v_lshlrev_b32 v80, 4, v2
    v_add_u32 v80, {3*BOFF + BLK*512:#x}, v80
    v_mov_b32 v84, 0x7f7f
    v_mov_b32 v85, 0x7f7f
    v_mov_b32 v86, 0x7f7f
    v_mov_b32 v87, 0x7f7f
    buffer_store_dwordx4 v[84:87], v80, s[52:55], 0 offen
    s_nop 1
    """)
    srd(a, 52, 30, 31, 0x11000, add=WS_WF)
    srd(a, 40, 20, 21, 4096)
    a("""
    s_lshl_b32 s47, s3, 13        ; (mat*4+ft)*8192
    v_lshlrev_b32 v80, 4, v2
    v_add_u32 v81, s47, v80
    v_add_u32 v82, 4096, v81
    v_lshlrev_b32 v83, 11, v9     ; 8h*256
    v_lshl_add_u32 v83, v13, 1, v83
    s_lshl_b32 s47, s45, 6
    v_add_u32 v83, s47, v83
    """)
    for j in range(8):
        a(f"buffer_load_ushort v{84+j}, v83, s[40:43], 0 offen offset:{j*256}")
    a("s_waitcnt lgkmcnt(0)")
    a("s_cmp_eq_u32 s46, 0")
    a("s_cbranch_scc0 P_wf1")
    for ks in range(8):
        a(f"buffer_store_dwordx4 {vr(WB+4*ks,4)}, v{81 + ks//4}, s[52:55], 0 offen offset:{(ks%4)*1024}")
    a("s_waitcnt vmcnt(8)")
    for j in range(8):
        a(f"v_lshlrev_b32 v{84+j}, 16, v{84+j}")
    for j in range(8):
        a(f"v_mul_f32 v{84+j}, s59, v{84+j}")
    for j in range(4):
        a(f"v_cvt_pk_bf16_f32 v{92+j}, v{84+2*j}, v{85+2*j}")
    a("s_lshl_b32 s47, s45, 10")
    a("s_add_u32 s47, s47, 0x10000")
    a("buffer_store_dwordx4 v[92:95], v80, s[52:55], s47 offen")
    a("s_endpgm")
    a.label("P_wf1")
    for ks in range(8):
        a(f"buffer_store_dwordx4 {vr(WV+4*ks,4)}, v{81 + ks//4}, s[52:55], 0 offen offset:{(ks%4)*1024}")
    a("s_endpgm")
    a.label("P_bin")
    a("""
    v_lshlrev_b32 v3, 4, v0       ; t*16
    v_mov_b32 v4, 0
    v_mov_b32 v5, 0
    v_mov_b32 v6, 0
    v_mov_b32 v7, 0
    """)
    for j in range(4):
        a(f"ds_write_b128 v3, v[4:7] offset:{j*8192}")
    a("v_lshlrev_b32 v8, 2, v0")
    a("ds_write_b32 v8, v4 offset:32768")
    a(f"s_mul_i32 s4, s2, {CH*4}")
    a("s_waitcnt lgkmcnt(0)")
    stamp(a, 2, 0)
    a("s_add_u32 s32, s12, s4\ns_addc_u32 s33, s13, 0")
    a(f"s_mov_b32 s34, {CH*4}\ns_mov_b32 s35, 0x00020000")
    a("s_add_u32 s36, s14, s4\ns_addc_u32 s37, s15, 0")
    a(f"s_mov_b32 s38, {CH*4}\ns_mov_b32 s39, 0x00020000")
    a("s_mov_b32 s5, 8192")
    D, S, RK, CA = 12, 20, 28, 36
    a(f"buffer_load_dwordx4 {vr(D,4)}, v3, s[36:39], 0 offen")
    a(f"buffer_load_dwordx4 {vr(D+4,4)}, v3, s[36:39], s5 offen")
    a(f"buffer_load_dwordx4 {vr(S,4)}, v3, s[32:35], 0 offen")
    a(f"buffer_load_dwordx4 {vr(S+4,4)}, v3, s[32:35], s5 offen")
    EPF = 2 if 'epf' in OPT else 0
    if EPF:
        a(f"s_mul_i32 s4, s2, {CH*32}")
        a("s_add_u32 s60, s10, s4\ns_addc_u32 s61, s11, 0")
        a(f"s_mov_b32 s62, {CH*32}\ns_mov_b32 s63, 0x00020000")
        a("v_lshlrev_b32 v47, 7, v0")
        a("v_add_u32 v48, 0x10000, v47")
        nt = " nt" if 'epfnt' in OPT else ""
        a(f"buffer_load_dword v49, v47, s[60:63], 0 offen{nt}")
        a(f"buffer_load_dword v50, v48, s[60:63], 0 offen{nt}")
    if 'warm' in OPT:
        EPF = 1
        a("""
        s_getpc_b64 s[64:65]
        P_pc:
        s_add_u32 s64, s64, edge_kernel-P_pc
        s_addc_u32 s65, s65, 0
        s_cmp_lt_u32 s3, 4
        s_cselect_b32 s60, s10, s64
        s_cselect_b32 s61, s11, s65
        s_cselect_b32 s66, 16, 7
        """.replace("        P_pc:", "P_pc:"))
        a(f"s_mov_b32 s67, E_end-edge_kernel")
        a(f"s_cselect_b32 s62, {E*32}, s67")
        a("s_cmp_eq_u32 s3, 7")
        a("s_cselect_b32 s60, s26, s60\ns_cselect_b32 s61, s27, s61\ns_cselect_b32 s66, 16, s66")
        a(f"s_cselect_b32 s62, {N*256}, s62")
        a("s_cselect_b32 s67, 63, 255")
        a("s_cmp_lt_u32 s2, 8")
        a("s_cselect_b32 s62, s62, 0")
        a("s_mov_b32 s63, 0x00020000")
        a("v_and_b32 v47, s67, v0")
        a("v_lshlrev_b32 v47, s66, v47")
        a("buffer_load_dword v49, v47, s[60:63], 0 offen")
    srd(a, 40, 30, 31, NRANGE*NCHUNK*128, add=WS_CELLS)
    srd(a, 44, 30, 31, WS_WF - WS_OVFC, add=WS_OVFC)
    a(f"""
    v_cmp_gt_u32 vcc, {CH//4 - 512}, v0
    s_mov_b64 s[48:49], vcc
    v_mov_b32 v9, 1
    v_mov_b32 v10, 21400
    v_mov_b32 v11, {65536-BLK}
    v_add_u32 v8, 1, v8           ; 4t+1
    s_mov_b32 s50, -49
    s_barrier
    """)
    stamp(a, 3, 0)
    a(f"s_waitcnt vmcnt({2+EPF})")
    stamp(a, 4, 0)
    for j in range(8):
        if j == 4: a("s_mov_b64 exec, s[48:49]")
        a(f"v_mul_u32_u24 v{CA+j}, v{D+j}, v10")
        a(f"v_lshrrev_b32 v{CA+j}, 20, v{CA+j}      ; range")
        a(f"v_lshlrev_b32 v44, 2, v{CA+j}")
        a(f"ds_add_rtn_u32 v{RK+j}, v44, v9 offset:32768")
    a("s_mov_b64 exec, -1")
    a(f"s_waitcnt vmcnt({EPF})")
    for j in range(8):
        a(f"v_mad_i32_i24 v{D+j}, v{CA+j}, s50, v{D+j}   ; loc")
        a(f"v_lshrrev_b32 v44, 2, v{D+j}")
        a(f"v_lshl_or_b32 v{D+j}, v{D+j}, 6, v44      ; (..g)<<6 | slot  (upper bits shift out)")
        a(f"v_mul_u32_u24 v44, v{S+j}, v10")
        a(f"v_lshrrev_b32 v44, 26, v44")
        a(f"v_mad_u32_u24 v{S+j}, v44, v11, v{S+j}")
        a(f"v_add_u32 v44, {(j%4) + (j//4)*2048}, v8")
        a(f"v_lshl_or_b32 v{S+j}, v{S+j}, 12, v44")
        a(f"v_lshl_or_b32 v{S+j}, v{D+j}, 24, v{S+j}   ; rec")
    a("s_waitcnt lgkmcnt(0)")
    stamp(a, 5, 0)
    a("s_mov_b64 s[52:53], 0")
    for j in range(8):
        if j < 4: a("s_mov_b64 exec, -1")
        else: a("s_mov_b64 exec, s[48:49]")
        a(f"v_lshl_add_u32 v44, v{CA+j}, 2, v{RK+j}")
        a(f"v_and_b32 v44, 31, v44")
        a(f"v_lshl_or_b32 v44, v{CA+j}, 5, v44")
        a(f"v_lshlrev_b32 v44, 2, v44")
        a(f"v_cmp_lt_u32 vcc, 31, v{RK+j}")
        a(f"s_or_b64 s[52:53], s[52:53], vcc")
        a(f"s_andn2_b64 exec, exec, vcc")
        a(f"ds_write_b32 v44, v{S+j}")
    a("s_mov_b64 exec, -1")
    a("s_cmp_eq_u64 s[52:53], 0")
    a("s_cbranch_scc1 P_noovf")
    a(f"s_mul_i32 s54, s2, {CH*4}")
    a(f"s_add_u32 s54, s54, {WS_OVFR - WS_OVFC:#x}")
    a(f"s_add_u32 s55, s54, {WS_OVFG - WS_OVFR:#x}")
    a("v_mov_b32 v45, 1024")
    a("v_mov_b32 v46, 0")
    for j in range(8):
        if j < 4: a("s_mov_b64 exec, -1")
        else: a("s_mov_b64 exec, s[48:49]")
        a(f"v_cmp_lt_u32 vcc, 31, v{RK+j}")
        a("s_and_b64 exec, exec, vcc")
        a(f"s_cbranch_execz P_ov{j}")
        a("ds_add_rtn_u32 v46, v45, v9 offset:32768")
        a("s_waitcnt lgkmcnt(0)")
        a("v_lshlrev_b32 v46, 2, v46")
        a(f"buffer_store_dword v{S+j}, v46, s[44:47], s54 offen")
        a(f"buffer_store_dword v{CA+j}, v46, s[44:47], s55 offen")
        a.label(f"P_ov{j}")
    a("s_mov_b64 exec, -1")
    a.label("P_noovf")
    a(f"""
    v_lshrrev_b32 v44, 3, v0
    v_mul_u32_u24 v44, {NCHUNK*128}, v44
    v_and_b32 v45, 7, v0
    v_lshl_add_u32 v44, v45, 4, v44
    s_lshl_b32 s54, s2, 7
    s_add_u32 s55, s54, {64*NCHUNK*128}
    s_add_u32 s56, s55, {64*NCHUNK*128}
    s_add_u32 s57, s56, {64*NCHUNK*128}
    v_mov_b32 v45, 1024
    s_waitcnt lgkmcnt(0)
    """)
    stamp(a, 6, 0)
    a("s_barrier")
    stamp(a, 7, 0)
    for j in range(4):
        a(f"ds_read_b128 {vr(12+4*j,4)}, v3 offset:{j*8192}")
    a("ds_read_b32 v46, v45 offset:32768")
    for j in range(4):
        a(f"s_waitcnt lgkmcnt({4-j})")
        a(f"buffer_store_dwordx4 {vr(12+4*j,4)}, v44, s[40:43], s{54+j} offen")
    stamp(a, 8, 0)
    if 'ts' in OPT:
        a("s_waitcnt vmcnt(0)")
        stamp_flush(a, 0)
        a("s_mov_b64 exec, -1")
    a("""
    s_lshl_b32 s54, s2, 2
    v_mov_b32 v45, 0
    v_cmp_eq_u32 vcc, 0, v0
    s_and_b64 exec, exec, vcc
    s_cbranch_execz P_end
    s_waitcnt lgkmcnt(0)
    buffer_store_dword v46, v45, s[44:47], s54 offen
    """)
    a.label("P_end")
    a("s_endpgm")

CAP   = 640
L_CNT, L_BAS, L_FLG, L_Z = 0, 1024, 2048, 2560
L_RL  = 4096
L_EO  = L_RL + 16*CAP
L_M   = L_EO + 16*CAP
L_E   = L_M + 64*CAP
L_X   = L_E + 32768
L_U   = L_X + 16384
L_A   = L_U + 16384
L_TOT = L_A + 16384
assert L_E % 8192 == 0
PADROW = 3*BOFF + BLK*512 + 128
PADE = 0x3FF000

ACC, G, BV, SEL, S_, P_, R_ = 0, 32, 64, 128, 144, 152, 160
WC, AOP, EE, OH = 176, 184, 192, 196
vE, vOH, vS, vSt, vR, vEOa, vEOk, vT, vT2, vTID, vCB, vTS = 200, 201, 202, 203, 204, 205, 206, 207, 208, 209, 210, 211
vIt, vIt0, vFl, vFa = 212, 213, 214, 215
WF = 216
vFo, vEm, vXa, vXt, vAd, vPf = 248, 249, 250, 251, 252, 253
NPF = int(next((o[3:] for o in OPT if o.startswith('pf=')), 0))

def sched(name, default):
    v = next((o.split('=')[1] for o in OPT if o.startswith(name + '=')), default)
    return {int(x.split(':')[0]): int(x.split(':')[1]) for x in v.split(',')}
SCH_L = sched('sl', '1:1,3:1,5:1,7:1,9:1,11:1,13:1,15:1')
SCH_D = sched('sd', '0:1,2:1,4:1,6:1,8:1,10:1,12:1,14:1')

def mfma(a, d, x, y, c):
    a(f"v_mfma_f32_32x32x16_bf16 {vr(d,16)}, {vr(x,4)}, {vr(y,4)}, {c if isinstance(c,str) else vr(c,16)}")

def edge_kernel(a):
    K = "edge_kernel"
    a.raw(f".globl {K}\n.p2align 8\n.type {K},@function")
    a.label(K)
    a(f"s_cmp_ge_u32 s2, {NRANGE}")
    a("s_cbranch_scc1 E_end")
    TSREG[0] = vTS
    stamp_rt(a, 0, 1); stamp(a, 1, 1)
    load_kernargs(a)
    REC, RK, RA, RV, EV, SL = 64, 72, 80, 88, 96, 104
    T0 = 112
    a(f"""
    v_mov_b32 v{vTID}, v0
    v_lshrrev_b32 v1, 6, v0
    v_lshrrev_b32 v{vCB}, 3, v0
    v_readfirstlane_b32 s3, v1
    v_lshlrev_b32 v{vCB}, 12, v{vCB}   ; chunk bits of first quad
    s_mov_b32 s6, 0
    s_mov_b32 s7, -1
    s_mov_b32 s71, {64<<12}
    s_mov_b32 s99, 0
    s_lshr_b32 s4, s3, 1
    s_and_b32 s5, s3, 1           ; fp
    """)
    a.label("E_round")
    t = T0
    a(f"""
    v_lshlrev_b32 v{t}, 4, v{vTID}
    v_mov_b32 v{t+4}, 0
    v_mov_b32 v{t+5}, 0
    v_mov_b32 v{t+6}, 0
    v_mov_b32 v{t+7}, 0
    v_mov_b32 v{t+8}, {PADROW:#x}
    v_mov_b32 v{t+9}, {PADROW:#x}
    v_mov_b32 v{t+10}, {PADROW:#x}
    v_mov_b32 v{t+11}, {PADROW:#x}
    v_mov_b32 v{t+12}, {PADE:#x}
    v_mov_b32 v{t+13}, {PADE:#x}
    v_mov_b32 v{t+14}, {PADE:#x}
    v_mov_b32 v{t+15}, {PADE:#x}
    v_add_u32 v{t+2}, 8192, v{t}
    """)
    a(f"""
    s_cmp_lg_u32 s6, 0
    s_cbranch_scc1 E_r0
    s_mul_i32 s33, s2, {NCHUNK*128}
    s_add_u32 s33, s33, {WS_CELLS:#x}
    s_mov_b32 s38, {NCHUNK*128}
    s_mov_b32 s39, 0x00020000
    s_waitcnt lgkmcnt(0)
    """)
    if 'ts2' in OPT: stamp(a, 8, 1)
    a("s_add_u32 s36, s30, s33\ns_addc_u32 s37, s31, 0")
    a(f"buffer_load_dwordx4 {vr(REC,4)}, v{t}, s[36:39], 0 offen")
    a(f"buffer_load_dwordx4 {vr(REC+4,4)}, v{t+2}, s[36:39], 0 offen")
    srd(a, 44, 8, 9, N*256)
    srd(a, 76, 30, 31, BLK*512, add=WS_BV)
    a("s_lshl_b32 s33, s3, 13")
    a(f"s_add_u32 s33, s33, {WS_WF:#x}")
    a("s_add_u32 s48, s30, s33\ns_addc_u32 s49, s31, 0\ns_mov_b32 s50, 0x2000\ns_mov_b32 s51, 0x00020000")
    a("s_lshl_b32 s33, s5, 11")
    a(f"s_add_u32 s33, s33, {WS_WC:#x}")
    a("s_add_u32 s72, s30, s33\ns_addc_u32 s73, s31, 0\ns_mov_b32 s74, 0x800\ns_mov_b32 s75, 0x00020000")
    a("s_lshl_b32 s33, s5, 8")
    a(f"s_add_u32 s33, s33, {WS_BV-128}")
    a(f"s_add_u32 s52, s30, s33\ns_addc_u32 s53, s31, 0\ns_mov_b32 s54, {BVSPAN:#x}")
    a("s_or_b32 s53, s53, 0x00040000\ns_mov_b32 s55, 0x00800000")
    srd(a, 56, 10, 11, E*32)
    srd(a, 60, 26, 27, N*256)
    srd(a, 64, 30, 31, WS_END - WS_OVFR, add=WS_OVFR)
    srd(a, 40, 30, 31, NCHUNK*4, add=WS_OVFC)
    a.label("E_r0")
    u = G
    w = R_
    def wload(ks): a(f"buffer_load_dwordx4 {vr(WF+4*ks,4)}, v{w+5 if ks<4 else w+6}, s[48:51], 0 offen offset:{(ks%4)*1024}")
    a(f"""
    v_and_b32 v{u}, 63, v{vTID}       ; lane
    s_mul_i32 s32, s2, {RN}
    s_lshl_b32 s33, s3, 3
    s_add_u32 s33, s33, s32
    v_lshrrev_b32 v{w}, 4, v{u}
    v_and_b32 v{w+1}, 15, v{u}
    v_add_u32 v{w+2}, s33, v{w}
    v_lshlrev_b32 v{w+2}, 8, v{w+2}
    s_lshl_b32 s33, s3, 1
    v_xor_b32 v{w+3}, s33, v{w+1}
    v_xor_b32 v{w+4}, 1, v{w+3}
    v_lshl_add_u32 v{w+3}, v{w+3}, 4, v{w+2}
    v_lshl_add_u32 v{w+4}, v{w+4}, 4, v{w+2}
    s_lshl_b32 s33, s3, 11
    s_add_u32 s33, s33, {L_X}
    s_mov_b32 m0, s33
    v_lshlrev_b32 v{w+5}, 4, v{u}
    v_add_u32 v{w+6}, 4096, v{w+5}
    """)
    if NPF:
        a(f"""
        s_lshr_b32 s33, s2, 3
        s_mul_i32 s33, s33, {BLK*512//32}
        v_lshlrev_b32 v{w+7}, 7, v{vTID}
        v_add_u32 v{w+7}, s33, v{w+7}
        v_cmp_gt_u32 vcc, {BLK*4//32}, v{vTID}
        s_nop 1
        v_cndmask_b32 v{w+7}, -1, v{w+7}, vcc
        """)
    mark = len(a.l)
    for j in range(5):
        a(f"ds_write_b128 v{t}, {vr(t+4,4)} offset:{L_M + j*8192}")
    a(f"""
    ds_write_b128 v{t}, {vr(t+8,4)} offset:{L_RL}
    ds_write_b128 v{t}, {vr(t+12,4)} offset:{L_EO}
    s_cmp_ge_u32 s3, 4
    s_cbranch_scc1 E_i1
    ds_write_b128 v{t}, {vr(t+4,4)}
    s_cmp_ge_u32 s3, 2
    s_cbranch_scc1 E_i1
    ds_write_b128 v{t}, {vr(t+8,4)} offset:{L_RL+8192}
    ds_write_b128 v{t}, {vr(t+12,4)} offset:{L_EO+8192}
    """)
    a.label("E_i1")
    a(f"""
    v_lshrrev_b32 v{u+1}, 5, v{u}     ; h
    v_and_b32 v{u+2}, 31, v{u}        ; m
    v_and_b32 v{u+3}, 1, v{u}
    v_xor_b32 v{u+3}, v{u+3}, v{u+1}
    v_lshlrev_b32 v{u+3}, 4, v{u+3}
    v_add_u32 v{vEOk}, -32, v{u+3}
    v_lshrrev_b32 v{u+3}, 1, v{u+2}
    v_lshlrev_b32 v{u+3}, 5, v{u+3}
    v_lshl_add_u32 v{u+3}, v{u+1}, 4, v{u+3}
    v_add_u32 v{vOH}, {L_M}, v{u+3}     ; M + (m>>1)*32 + 16h
    v_bfe_u32 v{u+3}, v{u}, 3, 1      ; r'>>1
    v_lshl_add_u32 v{u+3}, v{u+1}, 1, v{u+3}
    v_lshlrev_b32 v{u+3}, 5, v{u+3}
    v_and_b32 v{u+4}, 3, v{u}
    v_lshl_add_u32 v{u+3}, v{u+4}, 3, v{u+3}
    v_add_u32 v{u+3}, {L_M}, v{u+3}
    v_xor_b32 v{u+4}, 1, v{u+1}
    v_lshlrev_b32 v{u+4}, 6, v{u+4}
    v_add_u32 v{u+4}, {L_Z}, v{u+4}
    v_lshrrev_b32 v{u+5}, 2, v{u}
    v_xor_b32 v{u+5}, v{u+5}, v{w}
    v_and_b32 v{u+5}, 1, v{u+5}       ; 1: real
    v_lshlrev_b32 v{vSt}, 10, v{u+5}
    v_cmp_eq_u32 vcc, 1, v{u+5}
    v_lshlrev_b32 v{u+6}, 4, v{u+1}
    v_add_u32 v{vR}, {L_RL}, v{u+6}      ; RL + 16h
    v_cndmask_b32 v{vS}, v{u+4}, v{u+3}, vcc
    s_lshl_b32 s34, s5, 7
    s_add_u32 s33, s34, {L_EO}
    v_lshrrev_b32 v{u+3}, 1, v{u}
    v_lshlrev_b32 v{u+3}, 2, v{u+3}
    v_add_u32 v{vEOa}, s33, v{u+3}
    s_lshr_b32 s70, s3, 1
    s_lshl_b32 s33, s70, 3
    s_lshl_b32 s70, s70, 13
    s_add_u32 s70, s70, {L_E}
    v_lshrrev_b32 v{u+3}, 4, v{u+2}
    v_xor_b32 v{u+3}, v{u+3}, v{u+1}
    v_lshl_add_u32 v{u+3}, v{u+2}, 1, v{u+3}
    v_lshlrev_b32 v{u+3}, 4, v{u+3}
    v_add_u32 v{vE}, s70, v{u+3}
    s_add_u32 s33, s33, {L_FLG}
    v_mov_b32 v{vFa}, s33
    s_lshl_b32 s34, s5, 2
    s_add_u32 s33, s33, s34
    v_mov_b32 v{vFo}, s33
    v_mov_b32 v{vIt}, 1
    v_mov_b32 v{vIt0}, 0
    v_mov_b32 v{vEm}, 0x1fff
    v_mov_b32 v{u+8}, 16
    v_mov_b32 v{u+9}, 0x3f80
    v_mov_b32 v{u+10}, 0x80
    v_mov_b32 v{u+11}, 0xfff
    v_mul_u32_u24 v{u+13}, {CAP*16}, v{w}   ; group base (x16 units)
    v_add_u32 v{u+14}, s71, v{vCB}        ; chunk bits second quad
    v_mov_b32 v{u+15}, {L_FLG+32}
    """)
    a(f"""
    v_bfe_u32 v{w+8}, v{u}, 2, 1
    v_xor_b32 v{w+8}, v{w+8}, v{u+1}
    v_bfe_u32 v{w+9}, v{u}, 3, 2
    v_and_b32 v{w+10}, 3, v{u}
    v_lshl_or_b32 v{w+10}, v{w+9}, 2, v{w+10}
    v_lshl_or_b32 v{w+10}, v{w+8}, 4, v{w+10}
    """)
    for k in range(0, 16, 4):
        for i in range(4): a(f"v_cmp_eq_u32 s[{80+2*i}:{81+2*i}], {k+i}, v{w+10}")
        for i in range(4): a(f"v_cndmask_b32 v{SEL+k+i}, 0, v{u+9}, s[{80+2*i}:{81+2*i}]")
    a(f"""
    v_bfe_u32 v{w+8}, v{u}, 4, 1        ; rho>>4
    v_and_b32 v{w+9}, 3, v{w+1}
    v_bfe_u32 v{w+10}, v{w+1}, 2, 1
    v_bfe_u32 v{w+11}, v{w+1}, 3, 1
    v_lshl_or_b32 v{w+9}, v{w+10}, 3, v{w+9}
    v_lshl_or_b32 v{w+9}, v{w+11}, 2, v{w+9}   ; swapped
    s_cmp_lt_u32 s3, 4
    s_cselect_b64 s[68:69], -1, 0
    v_cndmask_b32 v{w+9}, v{w+1}, v{w+9}, s[68:69]   ; slot
    v_lshl_add_u32 v{w+8}, v{w+9}, 2, v{w+8}
    v_xor_b32 v{w+9}, v{w+9}, v{u+1}
    v_lshlrev_b32 v{w+9}, 4, v{w+9}
    v_lshl_or_b32 v{w+9}, v{w+8}, 8, v{w+9}
    v_add_u32 v{vXa}, {L_X}, v{w+9}
    s_and_b32 s35, s3, 3
    s_lshl_b32 s35, s35, 10
    s_mov_b32 s32, {L_U}
    s_cmp_lt_u32 s3, 4
    s_cselect_b32 s32, {L_A}, s32
    s_add_u32 s32, s32, s35
    v_add_u32 v{vAd}, s32, v{w+5}
    s_add_u32 s33, s2, 7
    s_and_b32 s33, s33, 7
    s_lshl_b32 s68, 0x01010101, s33
    """)
    lds_ = [f"buffer_load_dwordx4 v{w+3}, s[44:47], 0 offen lds", f"buffer_load_dwordx4 v{w+4}, s[44:47], 0 offen offset:1024 lds"]
    lds_ += [f"buffer_load_dwordx4 {vr(WF+4*ks,4)}, v{w+5 if ks<4 else w+6}, s[48:51], 0 offen offset:{(ks%4)*1024}" for ks in range(8)]
    lds_ += [f"buffer_load_dwordx4 {vr(WC,4)}, v{w+5}, s[72:75], 0 offen", f"buffer_load_dwordx4 {vr(WC+4,4)}, v{w+5}, s[72:75], 0 offen offset:1024"]
    sec = a.l[mark:]
    after = next(i for i, x in enumerate(sec) if x.startswith("E_i1:")) + 1
    out = ["    " + lds_.pop(0), "    " + lds_.pop(0)] + sec[:after]
    rest_ = sec[after:]
    step = len(rest_) // len(lds_)
    for i, x in enumerate(rest_):
        if i % step == 0 and lds_: out.append("    " + lds_.pop(0))
        out.append(x)
    assert not lds_
    a.l[mark:] = out
    if NPF: a(f"buffer_load_dword v{vPf}, v{w+7}, s[76:79], 0 offen")
    a("s_waitcnt lgkmcnt(0)")
    a("s_barrier")
    stamp(a, 2, 1)
    a(f"s_waitcnt vmcnt({12+NPF})")
    stamp(a, 3, 1)
    def em(j): return f"s[{80+2*j}:{81+2*j}]"
    for j in range(8):
        a(f"v_cmp_ne_u32 {em(j)}, 0, v{REC+j}")
        a(f"v_lshrrev_b32 v{RA+j}, 22, v{REC+j}")
        a(f"v_and_b32 v{RA+j}, 0x3fc, v{RA+j}")
    for j in range(8):
        a(f"s_mov_b64 exec, {em(j)}")
        a(f"ds_add_rtn_u32 v{RK+j}, v{RA+j}, v{u+8}")
    a(f"""
    s_or_b64 s[32:33], {em(3)}, {em(7)}
    s_mov_b32 s69, s68
    s_and_b64 exec, s[32:33], s[68:69]
    ds_write_b32 v{u+15}, v{u+8}
    s_mov_b64 exec, -1
    """)
    for j in range(8):
        a(f"v_lshrrev_b32 v{SL+j}, 23, v{REC+j}")
        a(f"v_lshrrev_b32 v{RV+j}, 3, v{REC+j}")
        a(f"v_and_or_b32 v{EV+j}, v{REC+j}, v{u+11}, v{vCB if j<4 else u+14}")
        a(f"v_and_b32 v{SL+j}, 0x1e, v{SL+j}")
        a(f"v_and_b32 v{RV+j}, 0x061ffe00, v{RV+j}")
    a("s_waitcnt lgkmcnt(0)")
    if 'ts2' in OPT: stamp(a, 10, 1)
    a("s_barrier")
    if 'ts2' in OPT: stamp(a, 9, 1)
    c = u + 16
    a(f"""
    ds_read_b128 v[{c}:{c+3}], v{w+5}
    ds_read_b32 v{c+10}, v{u+15}
    s_waitcnt lgkmcnt(1)
    v_add_u32 v{c}, 16, v{c}
    v_add_u32 v{c+1}, 16, v{c+1}
    v_add_u32 v{c+2}, 16, v{c+2}
    v_add_u32 v{c+3}, 16, v{c+3}
    v_and_b32 v{c}, -32, v{c}
    v_and_b32 v{c+1}, -32, v{c+1}
    v_and_b32 v{c+2}, -32, v{c+2}
    v_and_b32 v{c+3}, -32, v{c+3}
    v_add_u32 v{c+8}, v{c}, v{c+1}
    v_add3_u32 v{c+9}, v{c+8}, v{c+2}, v{c+3}
    v_sub_u32 v{c+4}, v{u+13}, v{c+9}
    s_nop 0
    v_add_u32_dpp v{c+9}, v{c+9}, v{c+9} row_shr:1 row_mask:0xf bank_mask:0xf
    s_nop 1
    v_add_u32_dpp v{c+9}, v{c+9}, v{c+9} row_shr:2 row_mask:0xf bank_mask:0xf
    s_nop 1
    v_add_u32_dpp v{c+9}, v{c+9}, v{c+9} row_shr:4 row_mask:0xf bank_mask:0xf
    s_nop 1
    v_add_u32_dpp v{c+9}, v{c+9}, v{c+9} row_shr:8 row_mask:0xf bank_mask:0xf
    v_add_u32 v{c+4}, v{c+4}, v{c+9}
    v_add_u32 v{c+5}, v{c+4}, v{c}
    v_add_u32 v{c+6}, v{c+4}, v{c+8}
    v_add_u32 v{c+7}, v{c+6}, v{c+2}
    ds_write_b128 v{w+5}, v[{c+4}:{c+7}] offset:{L_BAS}
    """)
    for j in range(8):
        a(f"ds_read_b32 v{RA+j}, v{RA+j} offset:{L_BAS}")
    a(f"""
    v_readlane_b32 s32, v{c+9}, 15
    v_readlane_b32 s33, v{c+9}, 31
    v_readlane_b32 s34, v{c+9}, 47
    v_readlane_b32 s35, v{c+9}, 63
    s_waitcnt lgkmcnt(9)
    v_readfirstlane_b32 s96, v{c+10}
    s_max_u32 s97, s32, s33
    s_max_u32 s98, s34, s35
    s_max_u32 s97, s97, s98       ; max n16
    s_cmp_lg_u32 s6, 0
    s_cbranch_scc1 E_noasg
    s_mov_b32 s99, s96            ; overflow lists may hold records of this range
    s_add_u32 s32, s32, 511
    s_add_u32 s33, s33, 511
    s_add_u32 s34, s34, 511
    s_add_u32 s35, s35, 511
    s_lshr_b32 s32, s32, 9
    s_lshr_b32 s33, s33, 9
    s_lshr_b32 s34, s34, 9
    s_lshr_b32 s35, s35, 9
    s_add_u32 s96, s32, s34
    s_add_u32 s98, s33, s35
    s_absdiff_i32 s68, s96, s98   ; (0,2)(1,3)
    s_mov_b32 s4, {0 | 1<<2 | 2<<4 | 3<<6}
    s_add_u32 s96, s32, s33
    s_add_u32 s98, s34, s35
    s_absdiff_i32 s69, s96, s98   ; (0,1)(2,3)
    s_cmp_lt_u32 s69, s68
    s_cselect_b32 s4, {0 | 2<<2 | 1<<4 | 3<<6}, s4
    s_min_u32 s68, s68, s69
    s_add_u32 s96, s32, s35
    s_add_u32 s98, s33, s34
    s_absdiff_i32 s69, s96, s98   ; (0,3)(1,2)
    s_cmp_lt_u32 s69, s68
    s_cselect_b32 s4, {0 | 1<<2 | 3<<4 | 2<<6}, s4
    s_and_b32 s32, s3, 6
    s_lshr_b32 s4, s4, s32
    s_and_b32 s4, s4, 3
    """)
    if 'nobal' in OPT: a("s_lshr_b32 s4, s3, 1")
    a.label("E_noasg")
    a(f"""
    s_lshl_b32 s32, s4, 4
    s_add_u32 s32, s32, 15
    s_mul_i32 s33, s4, {CAP*4}
    s_mul_i32 s34, s4, {CAP*16//1024}
    v_readlane_b32 s96, v{c+9}, s32      ; own n16
    s_mov_b32 s98, 0
    v_add_u32 v{vR}, s33, v{vR}
    v_add_u32 v{vEOa}, s33, v{vEOa}
    s_lshl_b32 s33, s33, 2
    v_add_u32 v{vOH}, s33, v{vOH}
    v_mad_u32_u24 v{vS}, v{vSt}, s34, v{vS}
    s_waitcnt lgkmcnt(0)
    """)
    for j in range(8):
        a(f"v_add_u32 v{RK+j}, v{RK+j}, v{RA+j}       ; gp16")
    if 'ts2' in OPT: stamp(a, 11, 1)
    a(f"s_cmp_gt_u32 s97, {CAP*16}")
    a("s_cbranch_scc0 E_nopend")
    a(f"s_mov_b32 s98, 1\ns_min_u32 s96, s96, {CAP*16}")
    for j in range(8):
        a(f"v_lshrrev_b32 v{c}, 30, v{REC+j}")
        a(f"v_add_u32 v{c}, 1, v{c}")
        a(f"v_mul_u32_u24 v{c}, {CAP*16}, v{c}        ; limit")
        a(f"v_cmp_lt_u32 vcc, v{RK+j}, v{c}")
        a(f"s_and_b64 {em(j)}, {em(j)}, vcc")
        a("s_nop 1")
        a(f"v_cndmask_b32 v{T0+j}, v{REC+j}, 0, {em(j)}")
    a(f"""
    s_lshl_b32 s33, s2, 14
    s_add_u32 s33, s33, {WS_PEND - WS_OVFR:#x}
    v_lshlrev_b32 v{c}, 5, v{vTID}
    v_add_u32 v{c}, s33, v{c}
    buffer_store_dwordx4 {vr(T0,4)}, v{c}, s[64:67], 0 offen
    buffer_store_dwordx4 {vr(T0+4,4)}, v{c}, s[64:67], 0 offen offset:16
    s_waitcnt vmcnt(0)
    """)
    a.label("E_nopend")
    for j in range(8):
        a(f"v_add_u32 v{RA+j}, v{RK+j}, v{RK+j}")
        a(f"v_bfi_b32 v{SL+j}, 31, v{SL+j}, v{RK+j}")
        a(f"v_lshrrev_b32 v{RK+j}, 2, v{RK+j}")
        a(f"v_bitop3_b32 v{RV+j}, v{RA+j}, v{u+10}, v{RV+j} bitop3:0xae   ; c | (~a & b)")
    for j in range(8):
        a(f"s_mov_b64 exec, {em(j)}")
        if 'nomem' in OPT: pass
        elif 'noe' in OPT: a(f"ds_write_b32 v{RK+j}, v{RV+j} offset:{L_RL}")
        elif 'nobv' in OPT: a(f"ds_write_b32 v{RK+j}, v{EV+j} offset:{L_EO}")
        else: a(f"ds_write2st64_b32 v{RK+j}, v{RV+j}, v{EV+j} offset0:{L_RL//256} offset1:{L_EO//256}")
        a(f"ds_write_b16 v{SL+j}, v{u+9} offset:{L_M}")
    a("s_mov_b64 exec, -1")
    a("""
    s_add_u32 s96, s96, 511
    s_lshr_b32 s96, s96, 9
    """)
    if 'ts2' in OPT: stamp(a, 13, 1)
    a(f"s_waitcnt vmcnt({10+NPF}) lgkmcnt(0)")
    a("s_barrier")
    stamp(a, 4, 1)
    Q = BV + 48
    a(f"ds_read_b32 v{vT}, v{vEOa}")
    a(f"ds_read_b32 v{OH}, v{vEOa} offset:256")
    for j in range(4):
        a(f"ds_read_b128 {vr(Q+4*j,4)}, v{vR} offset:{j*32}")
    for j in range(4):
        a(f"ds_read_b128 {vr(R_+4*j,4)}, v{vR} offset:{128+j*32}")
    a("s_mov_b32 s87, 102400")
    def eo_calc(src, tmp):
        return [f"v_lshrrev_b32 v{tmp}, 12, v{src}",
                f"v_and_b32 v{src}, 0xfff, v{src}",
                f"v_lshl_add_u32 v{src}, v{src}, 5, v{vEOk}",
                f"v_mad_u32_u24 v{src}, v{tmp}, s87, v{src}"]
    a("s_lshl_b32 s84, s5, 10")
    a("s_add_u32 s33, s70, s84")
    a("s_mov_b32 m0, s33")
    a("s_waitcnt lgkmcnt(8)")
    for x in eo_calc(vT, vT2): a(x)
    for x in eo_calc(OH, vT2): a(x)
    a(f"buffer_load_dwordx4 v{vT}, s[56:59], 0 offen lds")
    a(f"v_mov_b32 v{vT}, v{OH}")
    a("s_add_u32 s84, s84, 2048")
    a("s_add_u32 s33, s70, s84")
    a("s_mov_b32 m0, s33")
    bv0 = [f"buffer_load_dword v{BV+r}, v{Q+r}, s[52:55], 0 offen" for r in range(16)]
    bv1 = [f"buffer_load_dwordx4 v{vT}, s[56:59], 0 offen lds"] + [f"buffer_load_dword v{BV+16+r}, v{Q+r}, s[52:55], 0 offen offset:128" for r in range(16)]
    bv2 = [f"buffer_load_dword v{BV+32+r}, v{R_+r}, s[52:55], 0 offen" for r in range(16)]
    a("s_cmp_eq_u32 s6, 0")
    a("s_cbranch_scc1 E_gemm")
    a("s_waitcnt lgkmcnt(0)")
    for x in bv0: a(x)
    a("s_branch E_nogemm")
    a.label("E_gemm")
    def xread(ks):
        a(f"v_xor_b32 v{vXt}, {ks<<5}, v{vXa}")
        a(f"ds_read_b128 {vr(G+8*(ks%4),4)}, v{vXt}")
        a(f"ds_read_b128 {vr(G+8*(ks%4)+4,4)}, v{vXt} offset:512")
    for ks in range(4): xread(ks)
    a("s_cmp_lt_u32 s3, 4")
    a(f"s_cselect_b32 s34, {NEG_LOG2E:#x}, 1.0")
    a(f"s_waitcnt vmcnt({1+NPF}) lgkmcnt(0)")
    rest2 = list(bv0)
    GI = int(next((o[3:] for o in OPT if o.startswith('gi=')), 1))
    for ks in range(8):
        if ks >= 4: a(f"s_waitcnt lgkmcnt({2*(7-ks)})")
        mfma(a, ACC, G+8*(ks%4), WF+4*ks, "0" if ks == 0 else ACC)
        mfma(a, ACC+16, G+8*(ks%4)+4, WF+4*ks, "0" if ks == 0 else ACC+16)
        if ks < 4: xread(ks+4)
        for _ in range(GI if GI < 3 else (1 if ks < 2 else 0)): a(rest2.pop(0))
    a("s_nop 10")
    for r in range(32):
        a(f"v_mul_f32 v{ACC+r}, s34, v{ACC+r}")
    for r in range(16):
        a(f"v_cvt_pk_bf16_f32 v{G+r}, v{ACC+2*r}, v{ACC+2*r+1}")
    for j in range(4):
        a(f"ds_write_b128 v{vAd}, {vr(G+4*j,4)} offset:{j*4096}")
    for x in rest2: a(x)
    for r in range(32):
        a(f"v_mov_b32 v{ACC+r}, 0")
    a.label("E_nogemm")
    for r in range(16):
        a(f"v_mov_b32 v{S_+r}, 0          ; S and P")
    for r in range(0, 16, 2):
        a(f"v_mov_b32 v{G+16+r}, 0")
    a(f"v_and_b32 v{vT2}, 63, v{vTID}")
    a(f"v_lshlrev_b32 v{vT2}, 4, v{vT2}")
    a("s_lshl_b32 s33, s5, 11")
    a("s_lshl_b32 s34, s4, 12")
    a("s_add_u32 s33, s33, s34")
    a(f"s_add_u32 s33, s33, {L_A}")
    a(f"v_add_u32 v{vT2}, s33, v{vT2}")
    stamp(a, 5, 1)
    a("s_waitcnt vmcnt(16) lgkmcnt(0)")
    stamp(a, 6, 1)
    a("s_barrier")
    stamp(a, 7, 1)
    a(f"ds_read_b128 {vr(EE,4)}, v{vE}")
    a(f"ds_read_b128 {vr(OH,4)}, v{vOH}")
    a(f"ds_read_b128 {vr(AOP,4)}, v{vT2}")
    a(f"ds_read_b128 {vr(AOP+4,4)}, v{vT2} offset:1024")
    a(f"v_add_u32 v{vE}, 1024, v{vE}")
    a("s_mov_b32 s92, 0")
    a("s_cmp_eq_u32 s96, 0")
    a("s_cbranch_scc1 E_done")
    for x in bv1: a(x)
    a("s_waitcnt lgkmcnt(0)")
    mfma(a, G, EE, WC, "0")
    mfma(a, G, OH, AOP, G)
    a("s_waitcnt vmcnt(17)")
    for k in range(4):
        mfma(a, G, SEL+4*k, BV+4*k, G)
    if 'ts' in OPT and 'ts2' not in OPT: stamp(a, 9, 1)
    for x in bv2: a(x)
    if 'ts' in OPT and 'ts2' not in OPT: stamp(a, 8, 1)
    a("s_cmp_ge_u32 s3, 4")
    a("s_cbranch_scc1 E_entB")
    slow = []
    loop_start = len(a.l)
    for role in range(2):
        hiP = (2, 1)[role]
        X = "AB"[role]
        if role: a.label("E_entB")
        a(f"s_setprio {hiP}")
        a("s_nop 1")
        a.raw(".p2align 6")
        a.label(f"E_loop{X}")
        for n in range(4):
            f = n & 1
            gc, gn = G + 16*f, G + 16*(1-f)
            bc, bn, bl = BV + 16*n, BV + 16*((n+1)&3), BV + 16*((n+3)&3)
            tl = n >> 1
            ld = [f"buffer_load_dword v{bl+r}, v{R_+r}, s[52:55], 0 offen offset:{128*(1-f)}" for r in range(16)]
            eread = lambda tl_: f"ds_read_b128 {vr(EE,4)}, v{vE}"
            fread = lambda tl_: f"ds_read_b32 v{vFl}, v{vFa} offset:{4*(1-tl_)}"
            ds = []
            if f == 0:
                ds = [fread(tl), eread(tl), f"ds_read_b128 {vr(OH,4)}, v{vOH} offset:{(tl+1)*512}"]
                ds += [f"ds_read_b64_tr_b16 {vr(S_+2*k,2)}, v{vS} offset:{tl*512 + k*128}" for k in range(4)]
                ds += [f"ds_read_b128 {vr(R_+4*k,4)}, v{vR} offset:{(tl+2)*128 + k*32}" for k in range(4)]
                if n == 0: ds += [f"ds_read_b32 v{vT}, v{vEOa} offset:512"]
            dma = []
            if n == 2:
                dma = ["s_add_u32 s84, s84, 2048", "s_and_b32 s84, s84, 0x1fff", "s_add_u32 s33, s70, s84", "s_mov_b32 m0, s33", "s_nop 0",
                       f"buffer_load_dwordx4 v{vT}, s[56:59], 0 offen lds"]
            pub = [f"ds_write_b32 v{vFo}, v{vIt}"] if n == 0 else []
            def check(tl_):
                lab = f"E_sl{X}{tl_}"
                need = vIt if tl_ else vIt0
                a(f"v_cmp_gt_u32 vcc, v{need}, v{vFl}")
                a(f"s_cbranch_vccnz {lab}")
                a.label(f"{lab}r")
                slow.append((lab, fread(tl_), eread(tl_), need))
            mA = [(ACC+16*(1-f), S_, P_, ACC+16*(1-f)), (ACC+16*(1-f), S_+4, P_+4, ACC+16*(1-f)), (gn, EE, WC+4*(1-f), "0"), (gn, OH, AOP+4*(1-f), gn)]
            mB = [(gn, SEL+4*k, bn+4*k, gn) for k in range(4)]
            def trans(op, m):
                for r in range(16):
                    if r % 4 == 0: mfma(a, *m[r//4])
                    a(f"{op} v{gc+r}, v{gc+r}")
            adds = [f"v_add_f32 v{gc+r}, 1.0, v{gc+r}" for r in range(16)]
            simp = [f"v_add_f32 v{P_+j}, v{gc+2*j}, v{gc+2*j+1}" for j in range(8)]
            simp += [f"v_mul_f32 v{gc+2*j}, v{gc+2*j}, v{bc+2*j}" for j in range(8)]
            simp += [f"v_fmac_f32 v{gc+2*j}, v{gc+2*j+1}, v{bc+2*j+1}" for j in range(8)]
            cx = []
            if n == 1:
                adds += eo_calc(vT, vT2)[:2]; cx = eo_calc(vT, vT2)[2:]
            if n == 3:
                simp += [f"v_add_u32 v{vOH}, 1024, v{vOH}", f"v_add_u32 v{vS}, v{vSt}, v{vS}", f"v_add_u32 v{vR}, 256, v{vR}",
                         f"v_add_u32 v{vEOa}, 256, v{vEOa}", f"v_add_u32 v{vE}, 1024, v{vE}", f"v_add_u32 v{vIt}, 1, v{vIt}", f"v_add_u32 v{vIt0}, 1, v{vIt0}"]
            if n == 1:
                simp = [f"v_add_u32 v{vXt}, 1024, v{vE}"] + simp + [f"v_bitop3_b32 v{vE}, v{vEm}, v{vXt}, v{vE} bitop3:0xca   ; a ? b : c"]
            cvtp = [f"v_cvt_pk_bf16_f32 v{P_+j}, v{P_+j}, v{gn+2*j}" for j in range(8)]
            ctl = ["s_add_u32 s92, s92, 1", "s_cmp_lt_u32 s92, s96"] if f == 1 else []
            br = (["s_cbranch_scc0 E_fin"] if n == 1 else [f"s_cbranch_scc1 E_loop{X}"]) if f == 1 else []
            def emit(L):
                for x in L: a(x)
            def simple(ops):
                a("s_setprio 0"); emit(ops); a(f"s_setprio {hiP}")
            dm = 1 if n >= 2 else 0
            if role == 0:
                emit(cvtp); trans("v_exp_f32", mA)
                emit(dma + ld[:8])
                a(f"s_waitcnt vmcnt({24+dm})")
                emit(pub)
                simple(adds)
                emit(cx); trans("v_rcp_f32", mB)
                emit(ld[8:] + ds + ctl)
                if f == 0:
                    a("s_waitcnt lgkmcnt(0)")
                    check(tl)
                simple(simp)
                emit(br)
            else:
                if f == 1: a("s_waitcnt lgkmcnt(0)")
                emit(dma + ld[:8])
                if f == 1: check(tl)
                emit(cvtp); trans("v_exp_f32", mA)
                simple(adds)
                emit(ld[8:] + ds + ctl)
                a(f"s_waitcnt vmcnt({32+dm})")
                emit(pub)
                emit(cx); trans("v_rcp_f32", mB)
                simple(simp)
                emit(br)
        if role == 0: a("s_branch E_fin")
    body = a.l[loop_start:]
    def keep(x):
        if 'novalu' in OPT and any(k in x for k in ('v_exp', 'v_rcp', 'v_add_f32', 'v_mul_f32', 'v_fmac')): return False
        return True
    a.l[loop_start:] = [x for x in body if keep(x)]
    a.label("E_fin")
    for j in range(8): a(f"v_cvt_pk_bf16_f32 v{P_+j}, v{P_+j}, v{G+16+2*j}")
    mfma(a, ACC+16, S_, P_, ACC+16)
    a("s_setprio 0")
    mfma(a, ACC+16, S_+4, P_+4, ACC+16)
    a.label("E_done")
    stamp(a, 12, 1)
    a("s_or_b32 s33, s98, s99")
    a("s_cmp_eq_u32 s33, 0")
    a("s_cbranch_scc1 E_epi")
    a("s_waitcnt vmcnt(0) lgkmcnt(0)")
    a("s_cmp_lg_u32 s98, 0")
    a("s_cbranch_scc1 E_more_pend")
    a.label("E_nextchunk")
    a(f"""
    s_add_u32 s7, s7, 1
    s_cmp_ge_u32 s7, {NCHUNK}
    s_cbranch_scc1 E_epi
    s_lshl_b32 s33, s7, 2
    s_buffer_load_dword s34, s[40:43], s33
    s_waitcnt lgkmcnt(0)
    s_cmp_eq_u32 s34, 0
    s_cbranch_scc1 E_nextchunk
    s_mul_i32 s33, s7, {CH*4}
    v_lshlrev_b32 v{G}, 5, v{vTID}
    v_add_u32 v{G}, s33, v{G}
    v_add_u32 v{G+1}, {WS_OVFG - WS_OVFR:#x}, v{G}
    buffer_load_dwordx4 {vr(REC,4)}, v{G}, s[64:67], 0 offen
    buffer_load_dwordx4 {vr(REC+4,4)}, v{G}, s[64:67], 0 offen offset:16
    buffer_load_dwordx4 {vr(RK,4)}, v{G+1}, s[64:67], 0 offen
    buffer_load_dwordx4 {vr(RK+4,4)}, v{G+1}, s[64:67], 0 offen offset:16
    v_lshlrev_b32 v{G+2}, 3, v{vTID}
    s_lshl_b32 s33, s7, 12
    v_mov_b32 v{vCB}, s33
    s_mov_b32 s71, 0
    s_waitcnt vmcnt(0)
    """)
    for j in range(8):
        a(f"v_add_u32 v{G+3}, {j}, v{G+2}")
        a(f"v_cmp_gt_u32 vcc, s34, v{G+3}")
        a(f"v_cmp_eq_u32 s[68:69], s2, v{RK+j}")
        a("s_and_b64 vcc, vcc, s[68:69]")
        a("s_nop 1")
        a(f"v_cndmask_b32 v{REC+j}, 0, v{REC+j}, vcc")
    a("s_branch E_again")
    a.label("E_more_pend")
    a(f"""
    s_lshl_b32 s33, s2, 14
    s_add_u32 s33, s33, {WS_PEND - WS_OVFR:#x}
    v_lshlrev_b32 v{G}, 5, v{vTID}
    v_add_u32 v{G}, s33, v{G}
    buffer_load_dwordx4 {vr(REC,4)}, v{G}, s[64:67], 0 offen
    buffer_load_dwordx4 {vr(REC+4,4)}, v{G}, s[64:67], 0 offen offset:16
    """)
    a.label("E_again")
    a("""
    s_mov_b32 s6, 1
    s_waitcnt vmcnt(0) lgkmcnt(0)
    s_barrier
    s_branch E_round
    """)
    for lab, fr, er, need in slow:
        a.label(lab)
        a(fr)
        a(er)
        a("s_waitcnt lgkmcnt(0)")
        a(f"v_cmp_gt_u32 vcc, v{need}, v{vFl}")
        a(f"s_cbranch_vccnz {lab}")
        a(f"s_branch {lab}r")
    a.label("E_epi")
    e = R_
    a(f"""
    v_and_b32 v{e}, 63, v{vTID}
    v_lshrrev_b32 v{e+1}, 5, v{e}       ; h
    v_and_b32 v{e+2}, 31, v{e}          ; n
    s_lshl_b32 s33, s4, 12
    s_lshl_b32 s34, s5, 11
    s_add_u32 s33, s33, s34
    s_add_u32 s33, s33, {L_U}
    v_lshlrev_b32 v{e+3}, 4, v{e}
    v_add_u32 v{e+3}, s33, v{e+3}
    s_waitcnt lgkmcnt(0)
    ds_read_b128 {vr(EE,4)}, v{e+3}
    ds_read_b128 {vr(OH,4)}, v{e+3} offset:1024
    v_lshrrev_b32 v{e+3}, 3, v{e+2}
    s_lshl_b32 s33, s5, 3
    v_add_u32 v{e+3}, s33, v{e+3}       ; chunk (f=0)
    v_lshlrev_b32 v{e+4}, 2, v{e+1}     ; 4h
    v_xor_b32 v{e+3}, v{e+3}, v{e+4}
    v_lshlrev_b32 v{e+3}, 4, v{e+3}
    v_and_b32 v{e+5}, 7, v{e+2}
    v_lshl_add_u32 v{e+3}, v{e+5}, 1, v{e+3}
    v_lshl_add_u32 v{e+3}, v{e+4}, 10, v{e+3}
    s_lshl_b32 s33, s4, 8
    s_add_u32 s33, s33, {L_X}
    v_add_u32 v{e+3}, s33, v{e+3}
    """)
    for f in range(2):
        for r in range(8):
            s_ = (r//4)*8 + r%4
            a(f"v_xor_b32 v{e+5}, {(s_ ^ (4*f))<<4}, v{e+3}")
            a(f"ds_read_u16 v{G+8*f+r}, v{e+5} offset:{s_*1024}")
    a(f"""
    s_mul_i32 s33, s2, {RN}
    s_add_u32 s33, s33, s4
    s_lshl_b32 s33, s33, 8
    s_lshl_b32 s34, s5, 7
    s_add_u32 s33, s33, s34
    v_lshlrev_b32 v{e+6}, 12, v{e+1}
    v_lshl_add_u32 v{e+6}, v{e+2}, 1, v{e+6}
    v_add_u32 v{e+6}, s33, v{e+6}
    v_add_u32 v{e+7}, 8192, v{e+6}
    """)
    for f in range(2):
        for r in range(8):
            a(f"v_add_f32 v{ACC+16*f+8+r}, {EPS:#x}, v{ACC+16*f+8+r}")
    for f in range(2):
        for r in range(8):
            a(f"v_rcp_f32 v{ACC+16*f+8+r}, v{ACC+16*f+8+r}")
    a("s_waitcnt lgkmcnt(0)")
    for f in range(2):
        for r in range(8):
            uu = (EE if f == 0 else OH) + r//2
            if r % 2 == 0: a(f"v_lshlrev_b32 v{G+16+8*f+r}, 16, v{uu}")
            else: a(f"v_and_b32 v{G+16+8*f+r}, 0xffff0000, v{uu}")
            a(f"v_lshlrev_b32 v{G+8*f+r}, 16, v{G+8*f+r}")
    for f in range(2):
        for r in range(8):
            x = ACC+16*f+r
            a(f"v_fma_f32 v{x}, v{x}, v{x+8}, v{G+16+8*f+r}")
            a(f"v_max_f32 v{x}, 0, v{x}")
            a(f"v_add_f32 v{x}, v{x}, v{G+8*f+r}")
            a(f"v_cvt_pk_bf16_f32 v{x}, v{x}, v{x}")
    for r in range(8):
        if r == 4:
            a("s_cmp_eq_u32 s4, 0")
            a("s_cselect_b32 exec_hi, -1, 0")
        if r == 5:
            a("s_mov_b32 exec_hi, 0")
        for f in range(2):
            a(f"buffer_store_short v{ACC+16*f+r}, v{e+6 + r//4}, s[60:63], 0 offen offset:{(r%4)*1024 + 64*f}")
    stamp_flush(a, 1)
    a.label("E_end")
    a("s_endpgm")

def desc(a, name, vg, sg):
    a.raw(f""".amdhsa_kernel {name}
  .amdhsa_next_free_vgpr {vg}
  .amdhsa_next_free_sgpr {sg}
  .amdhsa_accum_offset {vg}
  .amdhsa_group_segment_fixed_size 0
  .amdhsa_kernarg_size 96
  .amdhsa_user_sgpr_count 2
  .amdhsa_user_sgpr_kernarg_segment_ptr 1
  .amdhsa_system_sgpr_workgroup_id_x 1
.end_amdhsa_kernel""")

def main(out):
    a = Asm()
    a.raw(f"; @launch kernel=prep_kernel grid=({NCHUNK+NGEMM+1},1,1) block=(512,1,1) lds=81920")
    a.raw(f"; @launch kernel=edge_kernel grid=({NRANGE},1,1) block=(512,1,1) lds={L_TOT}")
    a.raw('.amdgcn_target "amdgcn-amd-amdhsa--gfx950"')
    a.raw(".text")
    prep_kernel(a)
    edge_kernel(a)
    a.raw('.section .rodata,"a"')
    a.raw(".p2align 6")
    desc(a, "prep_kernel", 132 if "ts" in OPT else 128, 102 if "ts" in OPT else 96)
    a.raw(".p2align 6")
    desc(a, "edge_kernel", 256, 102)
    open(out, "w").write(a.text())

if __name__ == "__main__":
    main(sys.argv[1] if len(sys.argv) > 1 else f"cdna_kernels/{NAME}.s")
```
